```python
import torch

def _softmax(x, axis=-1):
    return torch.softmax(x, dim=axis)
def _gelu(x):
    return torch.nn.functional.gelu(x, approximate="tanh")
def _silu(x):
    return torch.nn.functional.silu(x)
def _sigmoid(x):
    return torch.sigmoid(x)
def _layernorm(x, axis=-1, eps=1e-5):
    m = x.mean(dim=axis, keepdim=True)
    v = x.var(dim=axis, keepdim=True, unbiased=False)
    return (x - m) / torch.sqrt(v + eps)
def _scatter_add(tgt, idx, src, axis=0):
    return tgt.clone().index_add_(axis, idx, src)
def _segment_sum(src, seg, n):
    out = torch.zeros((n,) + src.shape[1:], dtype=src.dtype)
    return out.index_add_(0, seg, src)
def _pad(x, pw):
    flat = tuple(v for pair in reversed(pw) for v in pair)
    return torch.nn.functional.pad(x, flat)

kernel_name = 'standalone__sliding_block_cached__decode'

def setup_inputs():

    _w = (lambda a: (lambda t: t.to(torch.bfloat16) if t.is_floating_point() else t)(torch.as_tensor(a)))
    B, Sq, D = 1, 1, 640
    Hq, Hkv, Sk, Dh = 32, 32, 4096, 192
    assert Hq % Hkv == 0, (Hq, Hkv)
    return {
        "x": _w((lambda *s: torch.randn(*s, dtype=torch.bfloat16) * 1.6)(B, Sq, D)),
        "k_cache": _w((lambda *s: torch.randn(*s, dtype=torch.bfloat16) * 1.6)(B, Hkv, Sk, Dh)),
        "v_cache": _w((lambda *s: torch.randn(*s, dtype=torch.bfloat16) * 0.05)(B, Hkv, Sk, Dh)),
        "wq": _w((lambda *s: torch.randn(*s, dtype=torch.bfloat16) * 1.6)(D, Hq * Dh) * (D ** -0.5)),
        "wo": _w((lambda *s: torch.randn(*s, dtype=torch.bfloat16) * 0.05)(Hq * Dh, D) * ((Hq * Dh) ** -0.5)),
    }

def reference(x, k_cache, v_cache, wq, wo):
    B, Sq, D = x.shape
    Hq, Dh = 32, 192
    Hkv, Sk = k_cache.shape[1], k_cache.shape[2]
    W = min(4096, max(256, Sk // 4))
    rep = Hq // Hkv
    q = (lambda x, *d: x.permute(*d))((x @ wq).reshape(B, Sq, Hq, Dh), 0, 2, 1, 3)
    k = (lambda x, n, axis: torch.repeat_interleave(x, n, dim=axis))(k_cache[:, :, Sk - W:, :], rep, axis=1)
    v = (lambda x, n, axis: torch.repeat_interleave(x, n, dim=axis))(v_cache[:, :, Sk - W:, :], rep, axis=1)
    scores = torch.einsum("bhqd,bhkd->bhqk", q, k) * (Dh ** -0.5)
    p = _softmax(scores, axis=-1)
    o = torch.einsum("bhqk,bhkd->bhqd", p, v)
    return (lambda x, *d: x.permute(*d))(o, 0, 2, 1, 3).reshape(B, Sq, Hq * Dh) @ wo
```

```python
import sys

class A:
    def __init__(self):
        self.lines = []
    def __call__(self, s):
        for ln in s.strip("\n").split("\n"):
            self.lines.append("    " + ln.strip())
    def label(self, l):
        self.lines.append(l + ":")
    def text(self):
        return "\n".join(self.lines) + "\n"

def gen(cfg):
    a = A()
    NW = 9
    L_MISC = 0
    L_WQ = 8192
    L_WO = L_WQ + 30720
    L_V = L_WO + 30720
    L_NONCE = L_MISC
    L_Q = L_MISC + 64
    L_ML = L_MISC + 512
    L_OW = L_MISC + 1024
    L_OBF = L_MISC + 1024 + 6144
    LDS_TOTAL = L_V + 49152
    WS_Q = 0
    WS_O = 0x60000
    WS_ML = 0xA0000
    WS_OUT = 0xA2000
    WS_BYTES = 0x100000
    SRD_X, SRD_K, SRD_V, SRD_WQ, SRD_WO, SRD_OUT, SRD_DBG, SRD_WS = [
        "s[%d:%d]" % (r, r + 3) for r in (32, 36, 40, 44, 48, 52, 56, 60)]
    POLL_MAX = 100000
    LOG2E = "0x3fb8aa3b"
    SCALE = "0x3d93cd3a"

    hdr = """; sliding-window decode attention, one launch, 256 workgroups x 9 waves
; @launch grid=(256,1,1) block=(%d,1,1) lds=%d
.amdgcn_target "amdgcn-amd-amdhsa--gfx950"
.text
.globl standalone__sliding_block_cached__decode_kernel
.p2align 8
.type standalone__sliding_block_cached__decode_kernel,@function
standalone__sliding_block_cached__decode_kernel:
""" % (NW * 64, LDS_TOTAL)

    a("""
    s_cmp_ge_u32 s2, 256
    s_cbranch_scc1 L_end
    s_load_dwordx16 s[16:31], s[0:1], 0
    v_and_b32 v1, 63, v0
    v_lshrrev_b32 v4, 6, v0
    v_lshrrev_b32 v2, 4, v1
    v_readfirstlane_b32 s3, v4
    v_and_b32 v3, 15, v1
    s_and_b32 s4, s2, 7
    s_lshr_b32 s5, s2, 3
    s_and_b32 s6, s5, 3
    s_lshl_b32 s4, s4, 2
    s_add_u32 s4, s4, s6
    s_lshr_b32 s5, s5, 2
    s_lshl_b32 s9, s4, 3
    s_add_u32 s9, s9, s5
    s_waitcnt lgkmcnt(0)
    """)
    sizes = [1280, 50331648, 50331648, 7864320, 7864320, 1280, 256, WS_BYTES]
    for n, sz in enumerate(sizes):
        r = 32 + 4 * n
        a("s_mov_b32 s%d, s%d" % (r, 16 + 2 * n))
        a("s_and_b32 s%d, s%d, 0xffff" % (r + 1, 17 + 2 * n))
        a("s_mov_b32 s%d, 0x%x" % (r + 2, sz))
        a("s_mov_b32 s%d, 0x20000" % (r + 3))
    a("""
    s_cmp_eq_u32 s3, 8
    s_cbranch_scc1 L_comm
    """)

    a("""
    s_mul_i32 s7, s5, 160
    s_mul_i32 s8, s5, 983040
    s_mul_i32 s10, s4, 384
    s_add_u32 s8, s8, s10
    s_lshl_b32 s10, s5, 7
    s_lshl_b32 s11, s3, 4
    s_add_u32 s10, s10, s11
    s_add_u32 s10, s10, 3072
    s_mul_i32 s10, s10, 384
    s_mul_i32 s11, s4, 1572864
    s_add_u32 s10, s10, s11
    s_add_u32 s11, s10, 4096
    s_mul_i32 s12, s4, 245760
    s_add_u32 s12, s12, s7
    """)
    a("v_lshlrev_b32 v5, 3, v2")
    for kb in range(5):
        a("buffer_load_dwordx2 v[%d:%d], v5, %s, s7 offen offset:%d" % (10 + 2 * kb, 11 + 2 * kb, SRD_X, 32 * kb))
    for m in range(4):
        a("""
        s_add_u32 s13, s3, %d
        s_min_u32 s13, s13, 29
        s_lshl_b32 s14, s13, 6
        v_add_u32 v6, s14, v1
        v_mul_u32_u24 v7, 2731, v6
        v_lshrrev_b32 v7, 16, v7
        v_mul_u32_u24 v8, 24, v7
        v_sub_u32 v8, v6, v8
        v_mul_u32_u24 v7, 12288, v7
        v_lshl_add_u32 v%d, v8, 4, v7
        v_mul_u32_u24 v7, 6554, v6
        v_lshrrev_b32 v7, 16, v7
        v_mul_u32_u24 v8, 10, v7
        v_sub_u32 v8, v6, v8
        v_mul_u32_u24 v7, 1280, v7
        v_lshl_add_u32 v%d, v8, 4, v7
        s_lshl_b32 s%d, s13, 10
        """ % (8 * m, 120 + m, 124 + m, 64 + m))
    for m in range(4):
        a("s_add_u32 m0, s%d, %d" % (64 + m, L_WQ))
        a("s_nop 0")
        a("buffer_load_dwordx4 v%d, %s, s8 offen lds" % (120 + m, SRD_WQ))
    a("""
    v_mul_u32_u24 v5, 384, v3
    v_lshl_add_u32 v5, v2, 4, v5
    v_lshlrev_b32 v9, 4, v1
    """)
    def k_load(ks):
        a("buffer_load_dwordx4 v[%d:%d], v5, %s, s10 offen offset:%d" % (20 + 4 * ks, 23 + 4 * ks, SRD_K, 64 * ks))
    def v_load(n):
        if n == 0:
            a("s_mul_i32 s13, s3, 6144")
            a("s_add_u32 s13, s13, %d" % L_V)
        if n < 4:
            a("s_mov_b32 m0, s13")
            a("s_nop 0")
            a("buffer_load_dwordx4 v9, %s, s10 offen offset:%d lds" % (SRD_V, 1024 * n))
        else:
            a("s_add_u32 m0, s13, 4096")
            a("s_nop 0")
            a("buffer_load_dwordx4 v9, %s, s11 offen offset:%d lds" % (SRD_V, 1024 * (n - 4)))
    def wo_load(m):
        a("s_add_u32 m0, s%d, %d" % (64 + m, L_WO))
        a("s_nop 0")
        a("buffer_load_dwordx4 v%d, %s, s12 offen lds" % (124 + m, SRD_WO))
    for ks in range(4):
        k_load(ks)
    a("""
    v_lshrrev_b32 v6, 2, v3
    v_and_b32 v7, 3, v3
    v_lshl_add_u32 v6, v2, 2, v6
    v_mul_u32_u24 v70, 384, v6
    v_lshl_add_u32 v70, v7, 3, v70
    """)
    a("s_waitcnt vmcnt(4)")
    a("s_barrier")
    a("""
    v_mov_b32 v6, %d
    ds_read_b32 v71, v6
    """ % L_NONCE)
    a("""
    s_add_u32 s13, s3, 8
    s_cmp_ge_u32 s13, 12
    s_cselect_b32 s14, 12, 0
    s_sub_u32 s13, s13, s14
    s_lshl_b32 s14, s3, 5
    s_lshl_b32 s15, s13, 5
    v_add_u32 v72, s14, v70
    v_add_u32 v73, s15, v70
    """)
    for kb in range(5):
        a("ds_read_b64_tr_b16 v[%d:%d], v72 offset:%d" % (80 + 2 * kb, 81 + 2 * kb, L_WQ + 6144 * kb))
    for kb in range(5):
        a("ds_read_b64_tr_b16 v[%d:%d], v73 offset:%d" % (90 + 2 * kb, 91 + 2 * kb, L_WQ + 6144 * kb))
    a("""
    s_mul_i32 s68, s9, 1536
    v_lshlrev_b32 v74, 3, v3
    s_lshl_b32 s14, s3, 7
    s_lshl_b32 s15, s13, 7
    v_add_u32 v75, s15, v74
    v_add_u32 v74, s14, v74
    s_waitcnt lgkmcnt(5)
    """)
    for kb in range(5):
        c = "0" if kb == 0 else "v[100:103]"
        a("v_mfma_f32_16x16x16_bf16 v[100:103], v[%d:%d], v[%d:%d], %s" % (10 + 2 * kb, 11 + 2 * kb, 80 + 2 * kb, 81 + 2 * kb, c))
    a("s_waitcnt lgkmcnt(0)")
    for kb in range(5):
        c = "0" if kb == 0 else "v[104:107]"
        a("v_mfma_f32_16x16x16_bf16 v[104:107], v[%d:%d], v[%d:%d], %s" % (10 + 2 * kb, 11 + 2 * kb, 90 + 2 * kb, 91 + 2 * kb, c))
    a("""
    s_nop 7
    s_nop 3
    v_mov_b32 v101, v71
    v_mov_b32 v105, v71
    s_mov_b64 exec, 0xffff
    buffer_store_dwordx2 v[100:101], v74, %s, s68 offen sc1
    buffer_store_dwordx2 v[104:105], v75, %s, s68 offen sc1
    s_mov_b64 exec, -1
    """ % (SRD_WS, SRD_WS))
    W = cfg.get("window", 4)
    for ks in (4, 5):
        a("s_waitcnt vmcnt(%d)" % (W - 1))
        k_load(ks)
    for n in range(6):
        a("s_waitcnt vmcnt(%d)" % (W - 1))
        v_load(n)
    a("s_barrier")
    a("v_lshlrev_b32 v6, 4, v2")
    for ks in range(6):
        a("ds_read_b128 v[%d:%d], v6 offset:%d" % (44 + 4 * ks, 47 + 4 * ks, L_Q + 64 * ks))
    a("s_waitcnt lgkmcnt(0)")
    a("s_waitcnt vmcnt(4)")
    for ks in range(6):
        c = "0" if ks == 0 else "v[100:103]"
        a("v_mfma_f32_16x16x32_bf16 v[100:103], v[%d:%d], v[%d:%d], %s" % (20 + 4 * ks, 23 + 4 * ks, 44 + 4 * ks, 47 + 4 * ks, c))
    for m in range(2):
        a("s_waitcnt vmcnt(%d)" % (W - 1))
        wo_load(m)
    a("""
    s_nop 7
    s_mov_b32 s13, %s
    s_mov_b32 s14, %s
    s_mov_b32 s15, 0xffff0000
    v_cvt_pk_bf16_f32 v104, v100, v101
    v_cvt_pk_bf16_f32 v105, v102, v103
    v_lshlrev_b32 v100, 16, v104
    v_and_b32 v101, s15, v104
    v_lshlrev_b32 v102, 16, v105
    v_and_b32 v103, s15, v105
    v_mul_f32 v100, s13, v100
    v_mul_f32 v101, s13, v101
    v_mul_f32 v102, s13, v102
    v_mul_f32 v103, s13, v103
    v_cvt_pk_bf16_f32 v104, v100, v101
    v_cvt_pk_bf16_f32 v105, v102, v103
    v_lshlrev_b32 v100, 16, v104
    v_and_b32 v101, s15, v104
    v_lshlrev_b32 v102, 16, v105
    v_and_b32 v103, s15, v105
    v_max_f32 v104, v100, v101
    v_max3_f32 v104, v104, v102, v103
    s_nop 0
    v_readlane_b32 s70, v104, 0
    v_readlane_b32 s71, v104, 16
    v_readlane_b32 s72, v104, 32
    v_readlane_b32 s73, v104, 48
    s_nop 1
    v_mov_b32 v106, s70
    v_max_f32 v106, s71, v106
    v_max_f32 v106, s72, v106
    v_max_f32 v106, s73, v106
    v_sub_f32 v100, v100, v106
    v_sub_f32 v101, v101, v106
    v_sub_f32 v102, v102, v106
    v_sub_f32 v103, v103, v106
    v_mul_f32 v100, s14, v100
    v_mul_f32 v101, s14, v101
    v_mul_f32 v102, s14, v102
    v_mul_f32 v103, s14, v103
    v_exp_f32 v100, v100
    v_exp_f32 v101, v101
    v_exp_f32 v102, v102
    v_exp_f32 v103, v103
    s_nop 0
    v_add_f32 v104, v100, v101
    v_add_f32 v105, v102, v103
    v_add_f32 v104, v104, v105
    v_cvt_pk_bf16_f32 v108, v100, v101
    v_cvt_pk_bf16_f32 v109, v102, v103
    v_readlane_b32 s70, v104, 0
    v_readlane_b32 s71, v104, 16
    v_readlane_b32 s72, v104, 32
    v_readlane_b32 s73, v104, 48
    s_nop 1
    v_mov_b32 v107, s70
    v_add_f32 v107, s71, v107
    v_add_f32 v107, s72, v107
    v_add_f32 v107, s73, v107
    """ % (SCALE, LOG2E))
    for m in range(2, 4):
        a("s_waitcnt vmcnt(%d)" % (W - 1))
        wo_load(m)
    a("""
    s_waitcnt vmcnt(4)
    s_mul_i32 s13, s3, 6144
    s_add_u32 s13, s13, %d
    v_add_u32 v72, s13, v70
    """ % L_V)
    for t in range(12):
        a("ds_read_b64_tr_b16 v[%d:%d], v72 offset:%d" % (20 + 2 * t, 21 + 2 * t, 32 * t))
    for t in range(12):
        a("s_waitcnt lgkmcnt(%d)" % (11 - t))
        a("v_mfma_f32_16x16x16_bf16 v[%d:%d], v[108:109], v[%d:%d], 0" % (44 + 4 * t, 47 + 4 * t, 20 + 2 * t, 21 + 2 * t))
    a("""
    s_mul_i32 s13, s3, 768
    v_lshlrev_b32 v6, 2, v3
    v_add_u32 v6, s13, v6
    s_lshl_b32 s13, s3, 3
    v_mov_b32 v7, s13
    s_nop 4
    s_mov_b64 exec, 0xffff
    """)
    for t in range(12):
        a("ds_write_b32 v6, v%d offset:%d" % (44 + 4 * t, L_OW + 64 * t))
    a("""
    s_mov_b64 exec, 1
    ds_write_b64 v7, v[106:107] offset:%d
    s_mov_b64 exec, -1
    s_waitcnt lgkmcnt(0)
    s_barrier
    """ % L_ML)
    a("""
    s_waitcnt vmcnt(0)
    s_barrier
    """)
    a("""
    s_cmp_ge_u32 s3, 5
    s_cbranch_scc1 L_end
    """)
    a("""
    v_lshrrev_b32 v6, 2, v3
    v_and_b32 v7, 3, v3
    v_lshl_add_u32 v6, v2, 3, v6
    v_mul_u32_u24 v72, 160, v6
    v_lshl_add_u32 v72, v7, 3, v72
    s_lshl_b32 s13, s3, 5
    v_add_u32 v72, s13, v72
    v_lshlrev_b32 v6, 4, v2
    """)
    for kb in range(6):
        a("ds_read_b128 v[%d:%d], v6 offset:%d" % (44 + 4 * kb, 47 + 4 * kb, L_OBF + 64 * kb))
        a("ds_read_b64_tr_b16 v[%d:%d], v72 offset:%d" % (20 + 4 * kb, 21 + 4 * kb, L_WO + 5120 * kb))
        a("ds_read_b64_tr_b16 v[%d:%d], v72 offset:%d" % (22 + 4 * kb, 23 + 4 * kb, L_WO + 5120 * kb + 640))
    a("""
    s_lshl_b32 s13, s5, 5
    s_add_u32 s13, s13, s4
    s_mul_i32 s13, s13, 640
    s_lshl_b32 s14, s3, 7
    s_add_u32 s13, s13, s14
    s_add_u32 s13, s13, %d
    v_lshlrev_b32 v74, 3, v3
    """ % WS_OUT)
    for kb in range(6):
        a("s_waitcnt lgkmcnt(%d)" % (15 - 3 * kb if 15 - 3 * kb <= 15 else 15))
        c = "0" if kb == 0 else "v[100:103]"
        a("v_mfma_f32_16x16x32_bf16 v[100:103], v[%d:%d], v[%d:%d], %s" % (44 + 4 * kb, 47 + 4 * kb, 20 + 4 * kb, 23 + 4 * kb, c))
    a("""
    s_nop 7
    s_nop 3
    v_mov_b32 v101, v71
    s_mov_b64 exec, 0xffff
    buffer_store_dwordx2 v[100:101], v74, %s, s13 offen sc1
    s_endpgm
    """ % SRD_WS)

    a.label("L_comm")
    a("""
    v_mov_b32 v5, 0
    s_cmp_lg_u32 s2, 0
    s_cbranch_scc1 L_c_nostore
    s_memrealtime s[70:71]
    s_waitcnt lgkmcnt(0)
    s_or_b32 s70, s70, 1
    v_mov_b32 v6, s70
    s_mov_b64 exec, 1
    buffer_store_dword v6, v5, %s, 0 offen sc1
    s_mov_b64 exec, -1
    """ % SRD_DBG)
    a.label("L_c_nostore")
    a("s_sleep %d" % cfg.get("sleep0", 24))
    a("s_mov_b32 s69, 0")
    a.label("L_c_poll0")
    a("""
    buffer_load_dword v71, v5, %s, 0 offen sc1
    s_waitcnt vmcnt(0)
    v_cmp_ne_u32 vcc, 0, v71
    s_cbranch_vccnz L_c_got0
    s_sleep 4
    s_add_u32 s69, s69, 1
    s_cmp_lt_u32 s69, %d
    s_cbranch_scc1 L_c_poll0
    """ % (SRD_DBG, POLL_MAX))
    a.label("L_c_got0")
    a("""
    v_mov_b32 v6, %d
    ds_write_b32 v6, v71
    s_waitcnt lgkmcnt(0)
    s_barrier
    """ % L_NONCE)
    a("""
    s_mul_i32 s68, s4, 12288
    v_lshlrev_b32 v7, 3, v1
    """)
    for ip in range(8):
        a("s_add_u32 s%d, s68, %d" % (72 + ip, WS_Q + 1536 * ip))
    a("s_sleep %d" % cfg.get("sleep1", 40))
    a("s_mov_b32 s69, 0")
    a.label("L_c_poll1")
    for cb in range(3):
        for ip in range(8):
            r = 10 + 2 * (cb * 8 + ip)
            a("buffer_load_dwordx2 v[%d:%d], v7, %s, s%d offen offset:%d sc1" % (r, r + 1, SRD_WS, 72 + ip, 512 * cb))
    a("s_waitcnt vmcnt(0)")
    a("v_xor_b32 v8, v11, v71")
    for k in range(1, 24):
        a("v_xor_b32 v9, v%d, v71" % (11 + 2 * k))
        a("v_or_b32 v8, v8, v9")
    a("""
    v_cmp_ne_u32 vcc, 0, v8
    s_cbranch_vccz L_c_got1
    s_sleep 4
    s_add_u32 s69, s69, 1
    s_cmp_lt_u32 s69, %d
    s_cbranch_scc1 L_c_poll1
    """ % POLL_MAX)
    a.label("L_c_got1")
    for cb in range(3):
        r0 = 10 + 16 * cb
        for ip in range(1, 8):
            a("v_add_f32 v%d, v%d, v%d" % (r0, r0, r0 + 2 * ip))
        a("v_cvt_pk_bf16_f32 v%d, v%d, v%d" % (r0, r0, r0))
    a("v_lshlrev_b32 v6, 1, v1")
    for cb in range(3):
        a("ds_write_b16 v6, v%d offset:%d" % (10 + 16 * cb, L_Q + 128 * cb))
    a("""
    s_waitcnt lgkmcnt(0)
    s_barrier
    s_barrier
    """)
    a("v_mov_b32 v6, 0")
    for k in range(4):
        a("ds_read_b128 v[%d:%d], v6 offset:%d" % (10 + 4 * k, 13 + 4 * k, L_ML + 16 * k))
    a("v_lshlrev_b32 v7, 2, v1")
    for w in range(8):
        for cb in range(3):
            a("ds_read_b32 v%d, v7 offset:%d" % (30 + 3 * w + cb, L_OW + 768 * w + 256 * cb))
    a("s_waitcnt lgkmcnt(15)")
    a("s_mov_b32 s14, %s" % LOG2E)
    a("v_max_f32 v26, v10, v12")
    for w in range(2, 8):
        a("v_max_f32 v26, v26, v%d" % (10 + 2 * w))
    for w in range(8):
        a("v_sub_f32 v%d, v%d, v26" % (10 + 2 * w, 10 + 2 * w))
    for w in range(8):
        a("v_mul_f32 v%d, s14, v%d" % (10 + 2 * w, 10 + 2 * w))
    for w in range(8):
        a("v_exp_f32 v%d, v%d" % (10 + 2 * w, 10 + 2 * w))
    a("s_nop 0")
    a("v_mul_f32 v27, v10, v11")
    for w in range(1, 8):
        a("v_fmac_f32 v27, v%d, v%d" % (10 + 2 * w, 11 + 2 * w))
    a("s_waitcnt lgkmcnt(0)")
    for cb in range(3):
        a("v_mul_f32 v%d, v10, v%d" % (60 + cb, 30 + cb))
        for w in range(1, 8):
            a("v_fmac_f32 v%d, v%d, v%d" % (60 + cb, 10 + 2 * w, 30 + 3 * w + cb))
    a("""
    v_mov_b32 v63, v71
    v_mov_b32 v28, v71
    v_mov_b32 v29, v71
    v_lshlrev_b32 v7, 4, v1
    s_lshl_b32 s13, s9, 10
    s_add_u32 s13, s13, %d
    s_lshl_b32 s15, s9, 4
    s_add_u32 s15, s15, %d
    buffer_store_dwordx4 v[60:63], v7, %s, s13 offen sc1
    s_mov_b64 exec, 1
    buffer_store_dwordx4 v[26:29], v5, %s, s15 offen sc1
    s_mov_b64 exec, -1
    """ % (WS_O, WS_ML, SRD_WS, SRD_WS))
    a("""
    s_lshl_b32 s13, s4, 13
    s_add_u32 s13, s13, %d
    s_add_u32 s15, s13, 4096
    s_lshl_b32 s68, s4, 7
    s_add_u32 s68, s68, %d
    v_and_b32 v8, 7, v1
    v_lshlrev_b32 v8, 4, v8
    """ % (WS_O, WS_ML))
    a("s_sleep %d" % cfg.get("sleep2", 8))
    a("s_mov_b32 s69, 0")
    a.label("L_c_poll2")
    for ip in range(8):
        a("buffer_load_dwordx4 v[%d:%d], v7, %s, %s offen offset:%d sc1" % (
            10 + 4 * ip, 13 + 4 * ip, SRD_WS, "s13" if ip < 4 else "s15", 1024 * (ip % 4)))
    a("buffer_load_dwordx4 v[42:45], v8, %s, s68 offen sc1" % SRD_WS)
    a("s_waitcnt vmcnt(0)")
    a("v_xor_b32 v46, v44, v71")
    for ip in range(8):
        a("v_xor_b32 v9, v%d, v71" % (13 + 4 * ip))
        a("v_or_b32 v46, v46, v9")
    a("""
    v_cmp_ne_u32 vcc, 0, v46
    s_cbranch_vccz L_c_got2
    s_sleep 2
    s_add_u32 s69, s69, 1
    s_cmp_lt_u32 s69, %d
    s_cbranch_scc1 L_c_poll2
    """ % POLL_MAX)
    a.label("L_c_got2")
    for ip in range(8):
        a("v_readlane_b32 s%d, v42, %d" % (72 + ip, ip))
        a("v_readlane_b32 s%d, v43, %d" % (80 + ip, ip))
    a("s_nop 1")
    a("v_mov_b32 v50, s72")
    for ip in range(1, 8):
        a("v_max_f32 v50, s%d, v50" % (72 + ip))
    for ip in range(8):
        a("v_sub_f32 v%d, s%d, v50" % (52 + ip, 72 + ip))
    for ip in range(8):
        a("v_mul_f32 v%d, s14, v%d" % (52 + ip, 52 + ip))
    for ip in range(8):
        a("v_exp_f32 v%d, v%d" % (52 + ip, 52 + ip))
    a("s_nop 0")
    a("v_mul_f32 v51, s80, v52")
    for ip in range(1, 8):
        a("v_fmac_f32 v51, s%d, v%d" % (80 + ip, 52 + ip))
    a("v_rcp_f32 v51, v51")
    for cb in range(3):
        a("v_mul_f32 v%d, v52, v%d" % (60 + cb, 10 + cb))
        for ip in range(1, 8):
            a("v_fmac_f32 v%d, v%d, v%d" % (60 + cb, 52 + ip, 10 + 4 * ip + cb))
    for cb in range(3):
        a("v_mul_f32 v%d, v%d, v51" % (60 + cb, 60 + cb))
        a("v_cvt_pk_bf16_f32 v%d, v%d, v%d" % (60 + cb, 60 + cb, 60 + cb))
    a("v_lshlrev_b32 v6, 1, v1")
    for cb in range(3):
        a("ds_write_b16 v6, v%d offset:%d" % (60 + cb, L_OBF + 128 * cb))
    a("""
    s_waitcnt lgkmcnt(0)
    s_barrier
    s_cmp_ge_u32 s4, 5
    s_cbranch_scc1 L_end
    """)
    a("""
    s_mul_i32 s13, s5, 20480
    s_lshl_b32 s14, s4, 7
    s_add_u32 s13, s13, s14
    s_add_u32 s13, s13, %d
    v_mul_u32_u24 v7, 640, v2
    v_lshl_add_u32 v7, v3, 3, v7
    """ % WS_OUT)
    for m in range(8):
        a("s_add_u32 s%d, s13, %d" % (72 + m, 2560 * m))
    a("s_sleep %d" % cfg.get("sleep3", 8))
    a("s_mov_b32 s69, 0")
    a.label("L_c_poll3")
    for m in range(8):
        a("buffer_load_dwordx2 v[%d:%d], v7, %s, s%d offen sc1" % (10 + 2 * m, 11 + 2 * m, SRD_WS, 72 + m))
    a("s_waitcnt vmcnt(0)")
    a("v_xor_b32 v8, v11, v71")
    for m in range(1, 8):
        a("v_xor_b32 v9, v%d, v71" % (11 + 2 * m))
        a("v_or_b32 v8, v8, v9")
    a("""
    v_cmp_ne_u32 vcc, 0, v8
    s_cbranch_vccz L_c_got3
    s_sleep 2
    s_add_u32 s69, s69, 1
    s_cmp_lt_u32 s69, %d
    s_cbranch_scc1 L_c_poll3
    """ % POLL_MAX)
    a.label("L_c_got3")
    for m in range(1, 8):
        a("v_add_f32 v10, v10, v%d" % (10 + 2 * m))
    a("""
    v_mov_b32 v11, v10
    s_nop 1
    v_permlane32_swap_b32 v10, v11
    v_add_f32 v10, v10, v11
    v_mov_b32 v11, v10
    s_nop 1
    v_permlane16_swap_b32 v10, v11
    v_add_f32 v10, v10, v11
    v_cvt_pk_bf16_f32 v10, v10, v10
    s_mul_i32 s13, s5, 160
    s_lshl_b32 s14, s4, 5
    s_add_u32 s13, s13, s14
    v_lshlrev_b32 v7, 1, v3
    s_mov_b64 exec, 0xffff
    buffer_store_short v10, v7, %s, s13 offen
    """ % SRD_OUT)
    a.label("L_end")
    a("s_endpgm")

    tail = """.section .rodata,"a"
.p2align 6
.amdhsa_kernel standalone__sliding_block_cached__decode_kernel
  .amdhsa_next_free_vgpr 128
  .amdhsa_next_free_sgpr 96
  .amdhsa_accum_offset 128
  .amdhsa_group_segment_fixed_size 0
  .amdhsa_kernarg_size 64
  .amdhsa_user_sgpr_count 2
  .amdhsa_user_sgpr_kernarg_segment_ptr 1
  .amdhsa_system_sgpr_workgroup_id_x 1
.end_amdhsa_kernel
"""
    return hdr + a.text() + tail

if __name__ == "__main__":
    cfg = {}
    out = "standalone__sliding_block_cached__decode.s"
    for arg in sys.argv[1:]:
        k, v = arg.split("=")
        if k == "out":
            out = v
        else:
            cfg[k] = int(v)
    open(out, "w").write(gen(cfg))
    print("wrote", out)
```

```python
import sys

class A:
    def __init__(self):
        self.lines = []
    def __call__(self, s):
        for ln in s.strip("\n").split("\n"):
            self.lines.append("    " + ln.strip())
    def label(self, l):
        self.lines.append(l + ":")
    def text(self):
        return "\n".join(self.lines) + "\n"

def gen(cfg):
    a = A()
    NW = 9
    L_MISC = 0
    L_WQ = 8192
    L_WO = L_WQ + 30720
    L_V = L_WO + 30720
    L_NONCE = L_MISC
    L_Q = L_MISC + 64
    L_ML = L_MISC + 512
    L_OW = L_MISC + 1024
    L_OBF = L_MISC + 1024 + 6144
    LDS_TOTAL = L_V + 49152
    WS_Q = 0
    WS_O = 0x60000
    WS_ML = 0xA0000
    WS_OUT = 0xA2000
    WS_BYTES = 0x100000
    SRD_X, SRD_K, SRD_V, SRD_WQ, SRD_WO, SRD_OUT, SRD_DBG, SRD_WS = [
        "s[%d:%d]" % (r, r + 3) for r in (32, 36, 40, 44, 48, 52, 56, 60)]
    POLL_MAX = 100000
    LOG2E = "0x3fb8aa3b"
    SCALE = "0x3d93cd3a"

    hdr = """; sliding-window decode attention, one launch, 256 workgroups x 9 waves
; @launch grid=(256,1,1) block=(%d,1,1) lds=%d
.amdgcn_target "amdgcn-amd-amdhsa--gfx950"
.text
.globl standalone__sliding_block_cached__decode_kernel
.p2align 8
.type standalone__sliding_block_cached__decode_kernel,@function
standalone__sliding_block_cached__decode_kernel:
""" % (NW * 64, LDS_TOTAL)

    a("""
    s_cmp_ge_u32 s2, 256
    s_cbranch_scc1 L_end
    s_load_dwordx16 s[16:31], s[0:1], 0
    v_and_b32 v1, 63, v0
    v_lshrrev_b32 v4, 6, v0
    v_lshrrev_b32 v2, 4, v1
    v_readfirstlane_b32 s3, v4
    v_and_b32 v3, 15, v1
    s_and_b32 s4, s2, 7
    s_lshr_b32 s5, s2, 3
    s_and_b32 s6, s5, 3
    s_lshl_b32 s4, s4, 2
    s_add_u32 s4, s4, s6
    s_lshr_b32 s5, s5, 2
    s_lshl_b32 s9, s4, 3
    s_add_u32 s9, s9, s5
    s_waitcnt lgkmcnt(0)
    """)
    sizes = [1280, 50331648, 50331648, 7864320, 7864320, 1280, 256, WS_BYTES]
    for n, sz in enumerate(sizes):
        r = 32 + 4 * n
        a("s_mov_b32 s%d, s%d" % (r, 16 + 2 * n))
        a("s_and_b32 s%d, s%d, 0xffff" % (r + 1, 17 + 2 * n))
        a("s_mov_b32 s%d, 0x%x" % (r + 2, sz))
        a("s_mov_b32 s%d, 0x20000" % (r + 3))
    a("""
    s_cmp_eq_u32 s3, 8
    s_cbranch_scc1 L_comm
    """)

    a("""
    s_mul_i32 s7, s5, 160
    s_mul_i32 s8, s5, 983040
    s_mul_i32 s10, s4, 384
    s_add_u32 s8, s8, s10
    s_lshl_b32 s10, s5, 7
    s_lshl_b32 s11, s3, 4
    s_add_u32 s10, s10, s11
    s_add_u32 s10, s10, 3072
    s_mul_i32 s10, s10, 384
    s_mul_i32 s11, s4, 1572864
    s_add_u32 s10, s10, s11
    s_add_u32 s11, s10, 4096
    s_mul_i32 s12, s4, 245760
    s_add_u32 s12, s12, s7
    """)
    a("v_lshlrev_b32 v5, 3, v2")
    for kb in range(5):
        a("buffer_load_dwordx2 v[%d:%d], v5, %s, s7 offen offset:%d" % (10 + 2 * kb, 11 + 2 * kb, SRD_X, 32 * kb))
    for m in range(4):
        a("""
        s_add_u32 s13, s3, %d
        s_min_u32 s13, s13, 29
        s_lshl_b32 s14, s13, 6
        v_add_u32 v6, s14, v1
        v_mul_u32_u24 v7, 2731, v6
        v_lshrrev_b32 v7, 16, v7
        v_mul_u32_u24 v8, 24, v7
        v_sub_u32 v8, v6, v8
        v_mul_u32_u24 v7, 12288, v7
        v_lshl_add_u32 v%d, v8, 4, v7
        v_mul_u32_u24 v7, 6554, v6
        v_lshrrev_b32 v7, 16, v7
        v_mul_u32_u24 v8, 10, v7
        v_sub_u32 v8, v6, v8
        v_mul_u32_u24 v7, 1280, v7
        v_lshl_add_u32 v%d, v8, 4, v7
        s_lshl_b32 s%d, s13, 10
        """ % (8 * m, 120 + m, 124 + m, 64 + m))
    for m in range(4):
        a("s_add_u32 m0, s%d, %d" % (64 + m, L_WQ))
        a("s_nop 0")
        a("buffer_load_dwordx4 v%d, %s, s8 offen lds" % (120 + m, SRD_WQ))
    a("""
    v_mul_u32_u24 v5, 384, v3
    v_lshl_add_u32 v5, v2, 4, v5
    v_lshlrev_b32 v9, 4, v1
    """)
    def k_load(ks):
        a("buffer_load_dwordx4 v[%d:%d], v5, %s, s10 offen offset:%d" % (20 + 4 * ks, 23 + 4 * ks, SRD_K, 64 * ks))
    def v_load(n):
        if n == 0:
            a("s_mul_i32 s13, s3, 6144")
            a("s_add_u32 s13, s13, %d" % L_V)
        if n < 4:
            a("s_mov_b32 m0, s13")
            a("s_nop 0")
            a("buffer_load_dwordx4 v9, %s, s10 offen offset:%d lds" % (SRD_V, 1024 * n))
        else:
            a("s_add_u32 m0, s13, 4096")
            a("s_nop 0")
            a("buffer_load_dwordx4 v9, %s, s11 offen offset:%d lds" % (SRD_V, 1024 * (n - 4)))
    def wo_load(m):
        a("s_add_u32 m0, s%d, %d" % (64 + m, L_WO))
        a("s_nop 0")
        a("buffer_load_dwordx4 v%d, %s, s12 offen lds" % (124 + m, SRD_WO))
    for ks in range(4):
        k_load(ks)
    a("""
    v_lshrrev_b32 v6, 2, v3
    v_and_b32 v7, 3, v3
    v_lshl_add_u32 v6, v2, 2, v6
    v_mul_u32_u24 v110, 384, v6
    v_lshl_add_u32 v110, v7, 3, v110
    """)
    a("s_waitcnt vmcnt(4)")
    a("s_barrier")
    a("""
    v_mov_b32 v6, %d
    ds_read_b32 v111, v6
    """ % L_NONCE)
    a("""
    s_add_u32 s13, s3, 8
    s_cmp_ge_u32 s13, 12
    s_cselect_b32 s14, 12, 0
    s_sub_u32 s13, s13, s14
    s_lshl_b32 s14, s3, 5
    s_lshl_b32 s15, s13, 5
    v_add_u32 v112, s14, v110
    v_add_u32 v113, s15, v110
    """)
    for kb in range(5):
        a("ds_read_b64_tr_b16 v[%d:%d], v112 offset:%d" % (80 + 2 * kb, 81 + 2 * kb, L_WQ + 6144 * kb))
    for kb in range(5):
        a("ds_read_b64_tr_b16 v[%d:%d], v113 offset:%d" % (90 + 2 * kb, 91 + 2 * kb, L_WQ + 6144 * kb))
    a("""
    s_mul_i32 s68, s9, 1536
    v_lshlrev_b32 v114, 3, v3
    s_lshl_b32 s14, s3, 7
    s_lshl_b32 s15, s13, 7
    v_add_u32 v115, s15, v114
    v_add_u32 v114, s14, v114
    s_waitcnt lgkmcnt(5)
    """)
    for kb in range(5):
        c = "0" if kb == 0 else "v[100:103]"
        a("v_mfma_f32_16x16x16_bf16 v[100:103], v[%d:%d], v[%d:%d], %s" % (10 + 2 * kb, 11 + 2 * kb, 80 + 2 * kb, 81 + 2 * kb, c))
    a("s_waitcnt lgkmcnt(0)")
    for kb in range(5):
        c = "0" if kb == 0 else "v[104:107]"
        a("v_mfma_f32_16x16x16_bf16 v[104:107], v[%d:%d], v[%d:%d], %s" % (10 + 2 * kb, 11 + 2 * kb, 90 + 2 * kb, 91 + 2 * kb, c))
    a("""
    s_nop 7
    s_nop 3
    v_mov_b32 v101, v111
    v_mov_b32 v105, v111
    s_mov_b64 exec, 0xffff
    buffer_store_dwordx2 v[100:101], v114, %s, s68 offen STF
    buffer_store_dwordx2 v[104:105], v115, %s, s68 offen STF
    s_mov_b64 exec, -1
    """ % (SRD_WS, SRD_WS))
    W = cfg.get("window", 4)
    for ks in (4, 5):
        a("s_waitcnt vmcnt(%d)" % (W - 1))
        k_load(ks)
    for n in range(6):
        a("s_waitcnt vmcnt(%d)" % (W - 1))
        v_load(n)
    a("s_barrier")
    a("v_lshlrev_b32 v6, 4, v2")
    for ks in range(6):
        a("ds_read_b128 v[%d:%d], v6 offset:%d" % (44 + 4 * ks, 47 + 4 * ks, L_Q + 64 * ks))
    a("s_waitcnt lgkmcnt(0)")
    a("s_waitcnt vmcnt(4)")
    for ks in range(6):
        c = "0" if ks == 0 else "v[100:103]"
        a("v_mfma_f32_16x16x32_bf16 v[100:103], v[%d:%d], v[%d:%d], %s" % (20 + 4 * ks, 23 + 4 * ks, 44 + 4 * ks, 47 + 4 * ks, c))
    for m in range(2):
        a("s_waitcnt vmcnt(%d)" % (W - 1))
        wo_load(m)
    a("""
    s_nop 7
    s_mov_b32 s13, %s
    s_mov_b32 s14, %s
    s_mov_b32 s15, 0xffff0000
    v_cvt_pk_bf16_f32 v104, v100, v101
    v_cvt_pk_bf16_f32 v105, v102, v103
    v_lshlrev_b32 v100, 16, v104
    v_and_b32 v101, s15, v104
    v_lshlrev_b32 v102, 16, v105
    v_and_b32 v103, s15, v105
    v_mul_f32 v100, s13, v100
    v_mul_f32 v101, s13, v101
    v_mul_f32 v102, s13, v102
    v_mul_f32 v103, s13, v103
    v_cvt_pk_bf16_f32 v104, v100, v101
    v_cvt_pk_bf16_f32 v105, v102, v103
    v_lshlrev_b32 v100, 16, v104
    v_and_b32 v101, s15, v104
    v_lshlrev_b32 v102, 16, v105
    v_and_b32 v103, s15, v105
    v_max_f32 v104, v100, v101
    v_max3_f32 v104, v104, v102, v103
    s_nop 0
    v_readlane_b32 s70, v104, 0
    v_readlane_b32 s71, v104, 16
    v_readlane_b32 s72, v104, 32
    v_readlane_b32 s73, v104, 48
    s_nop 1
    v_mov_b32 v106, s70
    v_max_f32 v106, s71, v106
    v_max_f32 v106, s72, v106
    v_max_f32 v106, s73, v106
    v_sub_f32 v100, v100, v106
    v_sub_f32 v101, v101, v106
    v_sub_f32 v102, v102, v106
    v_sub_f32 v103, v103, v106
    v_mul_f32 v100, s14, v100
    v_mul_f32 v101, s14, v101
    v_mul_f32 v102, s14, v102
    v_mul_f32 v103, s14, v103
    v_exp_f32 v100, v100
    v_exp_f32 v101, v101
    v_exp_f32 v102, v102
    v_exp_f32 v103, v103
    s_nop 0
    v_add_f32 v104, v100, v101
    v_add_f32 v105, v102, v103
    v_add_f32 v104, v104, v105
    v_cvt_pk_bf16_f32 v108, v100, v101
    v_cvt_pk_bf16_f32 v109, v102, v103
    v_readlane_b32 s70, v104, 0
    v_readlane_b32 s71, v104, 16
    v_readlane_b32 s72, v104, 32
    v_readlane_b32 s73, v104, 48
    s_nop 1
    v_mov_b32 v107, s70
    v_add_f32 v107, s71, v107
    v_add_f32 v107, s72, v107
    v_add_f32 v107, s73, v107
    """ % (SCALE, LOG2E))
    for m in range(2, 4):
        a("s_waitcnt vmcnt(%d)" % (W - 1))
        wo_load(m)
    a("""
    s_waitcnt vmcnt(4)
    s_mul_i32 s13, s3, 6144
    s_add_u32 s13, s13, %d
    v_add_u32 v112, s13, v110
    """ % L_V)
    for t in range(12):
        a("ds_read_b64_tr_b16 v[%d:%d], v112 offset:%d" % (20 + 2 * t, 21 + 2 * t, 32 * t))
    for t in range(12):
        a("s_waitcnt lgkmcnt(%d)" % (11 - t))
        a("v_mfma_f32_16x16x16_bf16 v[%d:%d], v[108:109], v[%d:%d], 0" % (44 + 4 * t, 47 + 4 * t, 20 + 2 * t, 21 + 2 * t))
    a("""
    s_mul_i32 s13, s3, 768
    v_lshlrev_b32 v6, 2, v3
    v_add_u32 v6, s13, v6
    s_lshl_b32 s13, s3, 3
    v_mov_b32 v7, s13
    s_nop 4
    s_mov_b64 exec, 0xffff
    """)
    for t in range(12):
        a("ds_write_b32 v6, v%d offset:%d" % (44 + 4 * t, L_OW + 64 * t))
    a("""
    s_mov_b64 exec, 1
    ds_write_b64 v7, v[106:107] offset:%d
    s_mov_b64 exec, -1
    s_waitcnt lgkmcnt(0)
    s_barrier
    """ % L_ML)
    a("""
    s_waitcnt vmcnt(0)
    s_barrier
    """)
    a("""
    s_cmp_ge_u32 s3, 5
    s_cbranch_scc1 L_end
    """)
    a("""
    v_lshrrev_b32 v6, 2, v3
    v_and_b32 v7, 3, v3
    v_lshl_add_u32 v6, v2, 3, v6
    v_mul_u32_u24 v112, 160, v6
    v_lshl_add_u32 v112, v7, 3, v112
    s_lshl_b32 s13, s3, 5
    v_add_u32 v112, s13, v112
    v_lshlrev_b32 v6, 4, v2
    """)
    for kb in range(6):
        a("ds_read_b128 v[%d:%d], v6 offset:%d" % (44 + 4 * kb, 47 + 4 * kb, L_OBF + 64 * kb))
        a("ds_read_b64_tr_b16 v[%d:%d], v112 offset:%d" % (20 + 4 * kb, 21 + 4 * kb, L_WO + 5120 * kb))
        a("ds_read_b64_tr_b16 v[%d:%d], v112 offset:%d" % (22 + 4 * kb, 23 + 4 * kb, L_WO + 5120 * kb + 640))
    a("""
    s_lshl_b32 s13, s5, 5
    s_add_u32 s13, s13, s4
    s_mul_i32 s13, s13, 640
    s_lshl_b32 s14, s3, 7
    s_add_u32 s13, s13, s14
    s_add_u32 s13, s13, %d
    v_lshlrev_b32 v114, 3, v3
    """ % WS_OUT)
    for kb in range(6):
        a("s_waitcnt lgkmcnt(%d)" % (15 - 3 * kb if 15 - 3 * kb <= 15 else 15))
        c = "0" if kb == 0 else "v[100:103]"
        a("v_mfma_f32_16x16x32_bf16 v[100:103], v[%d:%d], v[%d:%d], %s" % (44 + 4 * kb, 47 + 4 * kb, 20 + 4 * kb, 23 + 4 * kb, c))
    a("""
    s_nop 7
    s_nop 3
    v_mov_b32 v101, v111
    s_mov_b64 exec, 0xffff
    buffer_store_dwordx2 v[100:101], v114, %s, s13 offen STF
    s_endpgm
    """ % SRD_WS)

    a.label("L_comm")
    a("""
    v_mov_b32 v5, 0
    s_cmp_lg_u32 s2, 0
    s_cbranch_scc1 L_c_nostore
    s_memrealtime s[70:71]
    s_waitcnt lgkmcnt(0)
    s_or_b32 s70, s70, 1
    v_mov_b32 v6, s70
    s_mov_b64 exec, 1
    buffer_store_dword v6, v5, %s, 0 offen STF
    s_mov_b64 exec, -1
    """ % SRD_DBG)
    a.label("L_c_nostore")
    a("s_sleep %d" % cfg.get("sleep0", 24))
    a("s_mov_b32 s69, 0")
    a.label("L_c_poll0")
    a("""
    buffer_load_dword v71, v5, %s, 0 offen LDF
    s_waitcnt vmcnt(0)
    v_cmp_ne_u32 vcc, 0, v71
    s_cbranch_vccnz L_c_got0
    s_sleep 4
    s_add_u32 s69, s69, 1
    s_cmp_lt_u32 s69, %d
    s_cbranch_scc1 L_c_poll0
    """ % (SRD_DBG, POLL_MAX))
    a.label("L_c_got0")
    a("""
    v_mov_b32 v6, %d
    ds_write_b32 v6, v71
    s_waitcnt lgkmcnt(0)
    s_barrier
    """ % L_NONCE)
    a("""
    s_mul_i32 s68, s4, 12288
    v_lshlrev_b32 v7, 3, v1
    """)
    for ip in range(8):
        a("s_add_u32 s%d, s68, %d" % (72 + ip, WS_Q + 1536 * ip))
    a("s_sleep %d" % cfg.get("sleep1", 40))
    a("s_mov_b32 s69, 0")
    a.label("L_c_poll1")
    for cb in range(3):
        for ip in range(8):
            r = 10 + 2 * (cb * 8 + ip)
            a("buffer_load_dwordx2 v[%d:%d], v7, %s, s%d offen offset:%d LDF" % (r, r + 1, SRD_WS, 72 + ip, 512 * cb))
    a("s_waitcnt vmcnt(0)")
    a("v_xor_b32 v8, v11, v71")
    for k in range(1, 24):
        a("v_xor_b32 v9, v%d, v71" % (11 + 2 * k))
        a("v_or_b32 v8, v8, v9")
    a("""
    v_cmp_ne_u32 vcc, 0, v8
    s_cbranch_vccz L_c_got1
    s_sleep 4
    s_add_u32 s69, s69, 1
    s_cmp_lt_u32 s69, %d
    s_cbranch_scc1 L_c_poll1
    """ % POLL_MAX)
    a.label("L_c_got1")
    for cb in range(3):
        r0 = 10 + 16 * cb
        for ip in range(1, 8):
            a("v_add_f32 v%d, v%d, v%d" % (r0, r0, r0 + 2 * ip))
        a("v_cvt_pk_bf16_f32 v%d, v%d, v%d" % (r0, r0, r0))
    a("v_lshlrev_b32 v6, 1, v1")
    for cb in range(3):
        a("ds_write_b16 v6, v%d offset:%d" % (10 + 16 * cb, L_Q + 128 * cb))
    a("""
    s_waitcnt lgkmcnt(0)
    s_barrier
    s_barrier
    """)
    a("v_mov_b32 v6, 0")
    for k in range(4):
        a("ds_read_b128 v[%d:%d], v6 offset:%d" % (10 + 4 * k, 13 + 4 * k, L_ML + 16 * k))
    a("v_lshlrev_b32 v7, 2, v1")
    for w in range(8):
        for cb in range(3):
            a("ds_read_b32 v%d, v7 offset:%d" % (30 + 3 * w + cb, L_OW + 768 * w + 256 * cb))
    a("s_waitcnt lgkmcnt(15)")
    a("s_mov_b32 s14, %s" % LOG2E)
    a("v_max_f32 v26, v10, v12")
    for w in range(2, 8):
        a("v_max_f32 v26, v26, v%d" % (10 + 2 * w))
    for w in range(8):
        a("v_sub_f32 v%d, v%d, v26" % (10 + 2 * w, 10 + 2 * w))
    for w in range(8):
        a("v_mul_f32 v%d, s14, v%d" % (10 + 2 * w, 10 + 2 * w))
    for w in range(8):
        a("v_exp_f32 v%d, v%d" % (10 + 2 * w, 10 + 2 * w))
    a("s_nop 0")
    a("v_mul_f32 v27, v10, v11")
    for w in range(1, 8):
        a("v_fmac_f32 v27, v%d, v%d" % (10 + 2 * w, 11 + 2 * w))
    a("s_waitcnt lgkmcnt(0)")
    for cb in range(3):
        a("v_mul_f32 v%d, v10, v%d" % (60 + cb, 30 + cb))
        for w in range(1, 8):
            a("v_fmac_f32 v%d, v%d, v%d" % (60 + cb, 10 + 2 * w, 30 + 3 * w + cb))
    a("""
    v_mov_b32 v63, v71
    v_mov_b32 v28, v71
    v_mov_b32 v29, v71
    v_lshlrev_b32 v7, 4, v1
    s_lshl_b32 s13, s9, 10
    s_add_u32 s13, s13, %d
    s_lshl_b32 s15, s9, 4
    s_add_u32 s15, s15, %d
    buffer_store_dwordx4 v[60:63], v7, %s, s13 offen STF
    s_mov_b64 exec, 1
    buffer_store_dwordx4 v[26:29], v5, %s, s15 offen STF
    s_mov_b64 exec, -1
    """ % (WS_O, WS_ML, SRD_WS, SRD_WS))
    a("""
    s_lshl_b32 s13, s4, 13
    s_add_u32 s13, s13, %d
    s_add_u32 s15, s13, 4096
    s_lshl_b32 s68, s4, 7
    s_add_u32 s68, s68, %d
    v_and_b32 v8, 7, v1
    v_lshlrev_b32 v8, 4, v8
    """ % (WS_O, WS_ML))
    a("s_sleep %d" % cfg.get("sleep2", 8))
    a("s_mov_b32 s69, 0")
    a.label("L_c_poll2")
    for ip in range(8):
        a("buffer_load_dwordx4 v[%d:%d], v7, %s, %s offen offset:%d LDF" % (
            10 + 4 * ip, 13 + 4 * ip, SRD_WS, "s13" if ip < 4 else "s15", 1024 * (ip % 4)))
    a("buffer_load_dwordx4 v[42:45], v8, %s, s68 offen LDF" % SRD_WS)
    a("s_waitcnt vmcnt(0)")
    a("v_xor_b32 v46, v44, v71")
    for ip in range(8):
        a("v_xor_b32 v9, v%d, v71" % (13 + 4 * ip))
        a("v_or_b32 v46, v46, v9")
    a("""
    v_cmp_ne_u32 vcc, 0, v46
    s_cbranch_vccz L_c_got2
    s_sleep 2
    s_add_u32 s69, s69, 1
    s_cmp_lt_u32 s69, %d
    s_cbranch_scc1 L_c_poll2
    """ % POLL_MAX)
    a.label("L_c_got2")
    for ip in range(8):
        a("v_readlane_b32 s%d, v42, %d" % (72 + ip, ip))
        a("v_readlane_b32 s%d, v43, %d" % (80 + ip, ip))
    a("s_nop 1")
    a("v_mov_b32 v50, s72")
    for ip in range(1, 8):
        a("v_max_f32 v50, s%d, v50" % (72 + ip))
    for ip in range(8):
        a("v_sub_f32 v%d, s%d, v50" % (52 + ip, 72 + ip))
    for ip in range(8):
        a("v_mul_f32 v%d, s14, v%d" % (52 + ip, 52 + ip))
    for ip in range(8):
        a("v_exp_f32 v%d, v%d" % (52 + ip, 52 + ip))
    a("s_nop 0")
    a("v_mul_f32 v51, s80, v52")
    for ip in range(1, 8):
        a("v_fmac_f32 v51, s%d, v%d" % (80 + ip, 52 + ip))
    a("v_rcp_f32 v51, v51")
    for cb in range(3):
        a("v_mul_f32 v%d, v52, v%d" % (60 + cb, 10 + cb))
        for ip in range(1, 8):
            a("v_fmac_f32 v%d, v%d, v%d" % (60 + cb, 52 + ip, 10 + 4 * ip + cb))
    for cb in range(3):
        a("v_mul_f32 v%d, v%d, v51" % (60 + cb, 60 + cb))
        a("v_cvt_pk_bf16_f32 v%d, v%d, v%d" % (60 + cb, 60 + cb, 60 + cb))
    a("v_lshlrev_b32 v6, 1, v1")
    for cb in range(3):
        a("ds_write_b16 v6, v%d offset:%d" % (60 + cb, L_OBF + 128 * cb))
    a("""
    s_waitcnt lgkmcnt(0)
    s_barrier
    s_cmp_ge_u32 s4, 5
    s_cbranch_scc1 L_end
    """)
    a("""
    s_mul_i32 s13, s5, 20480
    s_lshl_b32 s14, s4, 7
    s_add_u32 s13, s13, s14
    s_add_u32 s13, s13, %d
    v_mul_u32_u24 v7, 640, v2
    v_lshl_add_u32 v7, v3, 3, v7
    """ % WS_OUT)
    for m in range(8):
        a("s_add_u32 s%d, s13, %d" % (72 + m, 2560 * m))
    a("s_sleep %d" % cfg.get("sleep3", 8))
    a("s_mov_b32 s69, 0")
    a.label("L_c_poll3")
    for m in range(8):
        a("buffer_load_dwordx2 v[%d:%d], v7, %s, s%d offen LDF" % (10 + 2 * m, 11 + 2 * m, SRD_WS, 72 + m))
    a("s_waitcnt vmcnt(0)")
    a("v_xor_b32 v8, v11, v71")
    for m in range(1, 8):
        a("v_xor_b32 v9, v%d, v71" % (11 + 2 * m))
        a("v_or_b32 v8, v8, v9")
    a("""
    v_cmp_ne_u32 vcc, 0, v8
    s_cbranch_vccz L_c_got3
    s_sleep 2
    s_add_u32 s69, s69, 1
    s_cmp_lt_u32 s69, %d
    s_cbranch_scc1 L_c_poll3
    """ % POLL_MAX)
    a.label("L_c_got3")
    for m in range(1, 8):
        a("v_add_f32 v10, v10, v%d" % (10 + 2 * m))
    a("""
    v_mov_b32 v11, v10
    s_nop 1
    v_permlane32_swap_b32 v10, v11
    v_add_f32 v10, v10, v11
    v_mov_b32 v11, v10
    s_nop 1
    v_permlane16_swap_b32 v10, v11
    v_add_f32 v10, v10, v11
    v_cvt_pk_bf16_f32 v10, v10, v10
    s_mul_i32 s13, s5, 160
    s_lshl_b32 s14, s4, 5
    s_add_u32 s13, s13, s14
    v_lshlrev_b32 v7, 1, v3
    s_mov_b64 exec, 0xffff
    buffer_store_short v10, v7, %s, s13 offen
    """ % SRD_OUT)
    a.label("L_end")
    a("s_endpgm")

    tail = """.section .rodata,"a"
.p2align 6
.amdhsa_kernel standalone__sliding_block_cached__decode_kernel
  .amdhsa_next_free_vgpr 128
  .amdhsa_next_free_sgpr 96
  .amdhsa_accum_offset 128
  .amdhsa_group_segment_fixed_size 0
  .amdhsa_kernarg_size 64
  .amdhsa_user_sgpr_count 2
  .amdhsa_user_sgpr_kernarg_segment_ptr 1
  .amdhsa_system_sgpr_workgroup_id_x 1
.end_amdhsa_kernel
"""
    fl = {0: 'sc1', 1: 'sc0 sc1', 2: 'sc0 sc1 nt', 3: 'nt', 4: 'sc1 nt'}
    body = a.text().replace('LDF', fl[cfg.get('ldf', 0)]).replace('STF', fl[cfg.get('stf', 0)])
    return hdr + body + tail

if __name__ == "__main__":
    cfg = {}
    out = "standalone__sliding_block_cached__decode.s"
    for arg in sys.argv[1:]:
        k, v = arg.split("=")
        if k == "out":
            out = v
        else:
            cfg[k] = int(v)
    open(out, "w").write(gen(cfg))
    print("wrote", out)
```

```python
import sys

class A:
    def __init__(self):
        self.lines = []
    def __call__(self, s):
        for ln in s.strip("\n").split("\n"):
            if ln.strip():
                self.lines.append("    " + ln.strip())
    def label(self, l):
        self.lines.append(l + ":")
    def text(self):
        return "\n".join(self.lines) + "\n"

def gen(cfg):
    a = A()
    NW = 9
    L_MISC = 0
    L_Q = L_MISC + 64
    L_ML = L_MISC + 512
    L_OW = L_MISC + 1024
    L_OBF = L_MISC + 1024 + 6144
    L_WQ = 8192
    L_WO = L_WQ + 30720
    L_V = L_WO + 30720
    LDS_TOTAL = L_V + 49152
    WS_Q = 0
    WS_O = 0x60000
    WS_ML = 0xA0000
    WS_OUT = 0xA2000
    WS_EPOCH = 0xF0000
    WS_BYTES = 0x100000
    SRD_X, SRD_K, SRD_V, SRD_WQ, SRD_WO, SRD_OUT, SRD_DBG, SRD_WS = [
        "s[%d:%d]" % (r, r + 3) for r in (32, 36, 40, 44, 48, 52, 56, 60)]
    POLL_MAX = 100000
    LOG2E = "0x3fb8aa3b"
    SCALE = "0x3d93cd3a"
    TAG = "s96"
    W = cfg.get("window", 4)
    PRE = cfg.get("pre", 4)
    WOPRE = cfg.get("wopre", 0)
    WOMID = cfg.get("womid", 2)
    NT = " nt" if cfg.get("nt", 0) else ""

    DIAG = cfg.get("diag", 0)
    if DIAG:
        WS_BYTES = 0x200000
    VD = 167
    def stamp(n):
        if DIAG:
            a("""
            s_memrealtime s[98:99]
            s_waitcnt lgkmcnt(0)
            v_writelane_b32 v%d, s98, %d
            """ % (VD, n))
    def count(n, sreg):
        if DIAG:
            a("v_writelane_b32 v%d, %s, %d" % (VD, sreg, n))
    def dump(role):
        if DIAG:
            a("""
            s_mov_b64 exec, -1
            s_lshl_b32 s97, s2, 9
            s_add_u32 s97, s97, %d
            v_lshlrev_b32 v%d, 2, v1
            buffer_store_dword v%d, v%d, %s, s97 offen
            """ % (0x100000 + 256 * role, VD - 1, VD, VD - 1, SRD_WS))

    def poll_loop(name, nsets, nloads, issue, check, post, delay, cnt_slot):
        for s in range(nsets):
            issue(s)
            if s < nsets - 1 and delay:
                a("s_sleep %d" % delay)
        a("s_mov_b32 s69, 0")
        a.label(name + "_top")
        for s in range(nsets):
            a("s_waitcnt vmcnt(%d)" % ((nsets - 1) * nloads))
            check(s)
            a("s_cbranch_vccz %s_ok%d" % (name, s))
            a("s_add_u32 s69, s69, 1")
            if nsets == 1:
                a("s_sleep 2")
            issue(s)
        a("""
        s_cmp_lt_u32 s69, %d
        s_cbranch_scc1 %s_top
        s_waitcnt vmcnt(0)
        """ % (POLL_MAX, name))
        for s in range(nsets):
            a.label("%s_ok%d" % (name, s))
            count(cnt_slot, "s69")
            post(s)
            if s < nsets - 1:
                a("s_branch %s_done" % name)
        a.label(name + "_done")

    hdr = """; sliding-window decode attention, one launch, 256 workgroups x 9 waves
; @launch grid=(256,1,1) block=(%d,1,1) lds=%d
.amdgcn_target "amdgcn-amd-amdhsa--gfx950"
.text
.globl standalone__sliding_block_cached__decode_kernel
.p2align 8
.type standalone__sliding_block_cached__decode_kernel,@function
standalone__sliding_block_cached__decode_kernel:
""" % (NW * 64, LDS_TOTAL)

    a("""
    s_cmp_ge_u32 s2, 256
    s_cbranch_scc1 L_end
    s_load_dwordx16 s[16:31], s[0:1], 0
    v_and_b32 v1, 63, v0
    v_lshrrev_b32 v4, 6, v0
    v_lshrrev_b32 v2, 4, v1
    v_readfirstlane_b32 s3, v4
    v_and_b32 v3, 15, v1
    s_and_b32 s4, s2, 7
    s_lshr_b32 s5, s2, 3
    s_and_b32 s6, s5, 3
    s_lshl_b32 s4, s4, 2
    s_add_u32 s4, s4, s6
    s_lshr_b32 s5, s5, 2
    s_lshl_b32 s9, s4, 3
    s_add_u32 s9, s9, s5
    s_waitcnt lgkmcnt(0)
    s_load_dword s96, s[30:31], 0x%x
    """ % WS_EPOCH)
    sizes = [1280, 50331648, 50331648, 7864320, 7864320, 1280, 256, WS_BYTES]
    for n, sz in enumerate(sizes):
        r = 32 + 4 * n
        a("s_mov_b32 s%d, s%d" % (r, 16 + 2 * n))
        a("s_and_b32 s%d, s%d, 0xffff" % (r + 1, 17 + 2 * n))
        a("s_mov_b32 s%d, 0x%x" % (r + 2, sz))
        a("s_mov_b32 s%d, 0x20000" % (r + 3))
    if DIAG:
        a("v_mov_b32 v%d, 0" % VD)
    stamp(0)
    a("""
    s_cmp_eq_u32 s3, 8
    s_cbranch_scc1 L_comm
    """)

    a("""
    s_mul_i32 s7, s5, 160
    s_mul_i32 s8, s5, 983040
    s_mul_i32 s10, s4, 384
    s_add_u32 s8, s8, s10
    s_lshl_b32 s10, s5, 7
    s_lshl_b32 s11, s3, 4
    s_add_u32 s10, s10, s11
    s_add_u32 s10, s10, 3072
    s_mul_i32 s10, s10, 384
    s_mul_i32 s11, s4, 1572864
    s_add_u32 s10, s10, s11
    s_add_u32 s11, s10, 4096
    s_mul_i32 s12, s4, 245760
    s_add_u32 s12, s12, s7
    """)
    for m in range(4):
        a("""
        s_add_u32 s13, s3, %d
        s_min_u32 s13, s13, 29
        s_lshl_b32 s14, s13, 6
        v_add_u32 v6, s14, v1
        v_mul_u32_u24 v7, 2731, v6
        v_lshrrev_b32 v7, 16, v7
        v_mul_u32_u24 v8, 24, v7
        v_sub_u32 v8, v6, v8
        v_mul_u32_u24 v7, 12288, v7
        v_lshl_add_u32 v%d, v8, 4, v7
        s_lshl_b32 s%d, s13, 10
        s_add_u32 m0, s%d, %d
        s_nop 0
        buffer_load_dwordx4 v%d, %s, s8 offen%s lds
        """ % (8 * m, 120 + m, 64 + m, 64 + m, L_WQ, 120 + m, SRD_WQ, NT))
    a("v_lshlrev_b32 v5, 3, v2")
    for kb in range(5):
        a("buffer_load_dwordx2 v[%d:%d], v5, %s, s7 offen offset:%d" % (10 + 2 * kb, 11 + 2 * kb, SRD_X, 32 * kb))
    a("""
    v_mul_u32_u24 v5, 384, v3
    v_lshl_add_u32 v5, v2, 4, v5
    v_lshlrev_b32 v9, 4, v1
    """)
    def k_load(ks):
        a("buffer_load_dwordx4 v[%d:%d], v5, %s, s10 offen offset:%d%s" % (20 + 4 * ks, 23 + 4 * ks, SRD_K, 64 * ks, NT))
    def v_load(n):
        if n < 4:
            a("s_mov_b32 m0, s70")
            a("s_nop 0")
            a("buffer_load_dwordx4 v9, %s, s10 offen offset:%d%s lds" % (SRD_V, 1024 * n, NT))
        else:
            a("s_add_u32 m0, s70, 4096")
            a("s_nop 0")
            a("buffer_load_dwordx4 v9, %s, s11 offen offset:%d%s lds" % (SRD_V, 1024 * (n - 4), NT))
    def wo_load(m):
        a("s_add_u32 m0, s%d, %d" % (64 + m, L_WO))
        a("s_nop 0")
        a("buffer_load_dwordx4 v%d, %s, s12 offen%s lds" % (124 + m, SRD_WO, NT))
    for ks in range(PRE):
        k_load(ks)
    for m in range(4):
        a("""
        s_lshr_b32 s14, s%d, 4
        v_add_u32 v6, s14, v1
        v_mul_u32_u24 v7, 6554, v6
        v_lshrrev_b32 v7, 16, v7
        v_mul_u32_u24 v8, 10, v7
        v_sub_u32 v8, v6, v8
        v_mul_u32_u24 v7, 1280, v7
        v_lshl_add_u32 v%d, v8, 4, v7
        """ % (64 + m, 124 + m))
    a("""
    v_lshrrev_b32 v6, 2, v3
    v_and_b32 v7, 3, v3
    v_lshl_add_u32 v6, v2, 2, v6
    v_mul_u32_u24 v110, 384, v6
    v_lshl_add_u32 v110, v7, 3, v110
    s_mul_i32 s70, s3, 6144
    s_add_u32 s70, s70, %d
    s_add_u32 s13, s3, 8
    s_cmp_ge_u32 s13, 12
    s_cselect_b32 s14, 12, 0
    s_sub_u32 s13, s13, s14
    s_lshl_b32 s14, s3, 5
    s_lshl_b32 s15, s13, 5
    v_add_u32 v112, s14, v110
    v_add_u32 v113, s15, v110
    s_mul_i32 s68, s9, 1536
    v_lshlrev_b32 v114, 3, v3
    s_lshl_b32 s14, s3, 7
    s_lshl_b32 s15, s13, 7
    v_add_u32 v115, s15, v114
    v_add_u32 v114, s14, v114
    s_waitcnt lgkmcnt(0)
    s_add_u32 s96, s96, 1
    s_waitcnt vmcnt(%d)
    """ % (L_V, PRE))
    if cfg.get("streamtest", 0):
        SW = cfg.get("sw", 0)
        stamp(1)
        seq = [("k", ks) for ks in range(PRE, 6)] + [("v", n) for n in range(6)] + [("o", m) for m in range(4)]
        for kind, n in seq:
            if SW:
                a("s_waitcnt vmcnt(%d)" % (SW - 1))
            {"k": k_load, "v": v_load, "o": wo_load}[kind](n)
        a("s_waitcnt vmcnt(10)")
        stamp(2)
        a("s_waitcnt vmcnt(4)")
        stamp(3)
        a("s_waitcnt vmcnt(0)")
        stamp(4)
        a("s_barrier")
        stamp(5)
        a("s_cmp_lg_u32 s3, 0")
        a("s_cbranch_scc1 L_end")
        dump(0)
        a("s_endpgm")
    stamp(1)
    a("s_barrier")
    stamp(2)
    for kb in range(5):
        a("ds_read_b64_tr_b16 v[%d:%d], v112 offset:%d" % (80 + 2 * kb, 81 + 2 * kb, L_WQ + 6144 * kb))
    for kb in range(5):
        a("ds_read_b64_tr_b16 v[%d:%d], v113 offset:%d" % (90 + 2 * kb, 91 + 2 * kb, L_WQ + 6144 * kb))
    a("s_waitcnt lgkmcnt(5)")
    for kb in range(5):
        c = "0" if kb == 0 else "v[100:103]"
        a("v_mfma_f32_16x16x16_bf16 v[100:103], v[%d:%d], v[%d:%d], %s" % (10 + 2 * kb, 11 + 2 * kb, 80 + 2 * kb, 81 + 2 * kb, c))
    a("s_waitcnt lgkmcnt(0)")
    for kb in range(5):
        c = "0" if kb == 0 else "v[104:107]"
        a("v_mfma_f32_16x16x16_bf16 v[104:107], v[%d:%d], v[%d:%d], %s" % (10 + 2 * kb, 11 + 2 * kb, 90 + 2 * kb, 91 + 2 * kb, c))
    a("""
    s_nop 7
    s_nop 3
    v_mov_b32 v101, %s
    v_mov_b32 v105, %s
    s_mov_b64 exec, 0xffff
    buffer_store_dwordx2 v[100:101], v114, %s, s68 offen sc1
    buffer_store_dwordx2 v[104:105], v115, %s, s68 offen sc1
    s_mov_b64 exec, -1
    """ % (TAG, TAG, SRD_WS, SRD_WS))
    stamp(3)
    seq = [("k", ks) for ks in range(PRE, 6)] + [("v", n) for n in range(6)] + [("o", m) for m in range(WOPRE)]
    for kind, n in seq:
        a("s_waitcnt vmcnt(%d)" % (W - 1))
        {"k": k_load, "v": v_load, "o": wo_load}[kind](n)
    stamp(4)
    a("s_barrier")
    stamp(5)
    a("v_lshlrev_b32 v6, 4, v2")
    for ks in range(6):
        a("ds_read_b128 v[%d:%d], v6 offset:%d" % (44 + 4 * ks, 47 + 4 * ks, L_Q + 64 * ks))
    a("s_waitcnt lgkmcnt(0)")
    a("s_waitcnt vmcnt(%d)" % (6 + WOPRE))
    for ks in range(6):
        c = "0" if ks == 0 else "v[100:103]"
        a("v_mfma_f32_16x16x32_bf16 v[100:103], v[%d:%d], v[%d:%d], %s" % (20 + 4 * ks, 23 + 4 * ks, 44 + 4 * ks, 47 + 4 * ks, c))
    for m in range(WOPRE, WOMID):
        a("s_waitcnt vmcnt(%d)" % (W - 1))
        wo_load(m)
    a("""
    s_nop 7
    s_nop 3
    s_mov_b32 s13, %s
    s_mov_b32 s14, %s
    s_mov_b32 s15, 0xffff0000
    v_cvt_pk_bf16_f32 v104, v100, v101
    v_cvt_pk_bf16_f32 v105, v102, v103
    v_lshlrev_b32 v100, 16, v104
    v_and_b32 v101, s15, v104
    v_lshlrev_b32 v102, 16, v105
    v_and_b32 v103, s15, v105
    v_mul_f32 v100, s13, v100
    v_mul_f32 v101, s13, v101
    v_mul_f32 v102, s13, v102
    v_mul_f32 v103, s13, v103
    v_cvt_pk_bf16_f32 v104, v100, v101
    v_cvt_pk_bf16_f32 v105, v102, v103
    v_lshlrev_b32 v100, 16, v104
    v_and_b32 v101, s15, v104
    v_lshlrev_b32 v102, 16, v105
    v_and_b32 v103, s15, v105
    v_max_f32 v104, v100, v101
    v_max3_f32 v104, v104, v102, v103
    s_nop 0
    v_readlane_b32 s72, v104, 0
    v_readlane_b32 s73, v104, 16
    v_readlane_b32 s74, v104, 32
    v_readlane_b32 s75, v104, 48
    s_nop 1
    v_mov_b32 v106, s72
    v_max_f32 v106, s73, v106
    v_max_f32 v106, s74, v106
    v_max_f32 v106, s75, v106
    v_sub_f32 v100, v100, v106
    v_sub_f32 v101, v101, v106
    v_sub_f32 v102, v102, v106
    v_sub_f32 v103, v103, v106
    v_mul_f32 v100, s14, v100
    v_mul_f32 v101, s14, v101
    v_mul_f32 v102, s14, v102
    v_mul_f32 v103, s14, v103
    v_exp_f32 v100, v100
    v_exp_f32 v101, v101
    v_exp_f32 v102, v102
    v_exp_f32 v103, v103
    s_nop 0
    v_add_f32 v104, v100, v101
    v_add_f32 v105, v102, v103
    v_add_f32 v104, v104, v105
    v_cvt_pk_bf16_f32 v108, v100, v101
    v_cvt_pk_bf16_f32 v109, v102, v103
    v_readlane_b32 s72, v104, 0
    v_readlane_b32 s73, v104, 16
    v_readlane_b32 s74, v104, 32
    v_readlane_b32 s75, v104, 48
    s_nop 1
    v_mov_b32 v107, s72
    v_add_f32 v107, s73, v107
    v_add_f32 v107, s74, v107
    v_add_f32 v107, s75, v107
    """ % (SCALE, LOG2E))
    for m in range(max(WOPRE, WOMID), 4):
        a("s_waitcnt vmcnt(%d)" % (W - 1))
        wo_load(m)
    stamp(6)
    a("s_waitcnt vmcnt(4)")
    stamp(7)
    a("v_add_u32 v112, s70, v110")
    for t in range(12):
        a("ds_read_b64_tr_b16 v[%d:%d], v112 offset:%d" % (20 + 2 * t, 21 + 2 * t, 32 * t))
    for t in range(12):
        a("s_waitcnt lgkmcnt(%d)" % (11 - t))
        a("v_mfma_f32_16x16x16_bf16 v[%d:%d], v[108:109], v[%d:%d], 0" % (44 + 4 * t, 47 + 4 * t, 20 + 2 * t, 21 + 2 * t))
    a("""
    s_mul_i32 s13, s3, 768
    v_lshlrev_b32 v6, 2, v3
    v_add_u32 v6, s13, v6
    s_lshl_b32 s13, s3, 3
    v_mov_b32 v7, s13
    s_nop 4
    s_mov_b64 exec, 0xffff
    """)
    for t in range(12):
        a("ds_write_b32 v6, v%d offset:%d" % (44 + 4 * t, L_OW + 64 * t))
    a("""
    s_mov_b64 exec, 1
    ds_write_b64 v7, v[106:107] offset:%d
    s_mov_b64 exec, -1
    s_waitcnt lgkmcnt(0)
    """ % L_ML)
    stamp(8)
    a("s_barrier")
    a("""
    v_lshrrev_b32 v6, 2, v3
    v_and_b32 v7, 3, v3
    v_lshl_add_u32 v6, v2, 3, v6
    v_mul_u32_u24 v112, 160, v6
    v_lshl_add_u32 v112, v7, 3, v112
    s_lshl_b32 s13, s3, 5
    v_add_u32 v112, s13, v112
    v_lshlrev_b32 v6, 4, v2
    s_lshl_b32 s13, s5, 5
    s_add_u32 s13, s13, s4
    s_mul_i32 s13, s13, 640
    s_lshl_b32 s14, s3, 7
    s_add_u32 s13, s13, s14
    s_add_u32 s13, s13, %d
    v_lshlrev_b32 v114, 3, v3
    s_waitcnt vmcnt(0)
    """ % WS_OUT)
    stamp(9)
    a("s_barrier")
    stamp(10)
    a("""
    s_cmp_ge_u32 s3, 5
    s_cbranch_scc1 L_end
    """)
    for kb in range(6):
        a("ds_read_b128 v[%d:%d], v6 offset:%d" % (44 + 4 * kb, 47 + 4 * kb, L_OBF + 64 * kb))
        a("ds_read_b64_tr_b16 v[%d:%d], v112 offset:%d" % (20 + 4 * kb, 21 + 4 * kb, L_WO + 5120 * kb))
        a("ds_read_b64_tr_b16 v[%d:%d], v112 offset:%d" % (22 + 4 * kb, 23 + 4 * kb, L_WO + 5120 * kb + 640))
    for kb in range(6):
        a("s_waitcnt lgkmcnt(%d)" % (15 - 3 * kb))
        c = "0" if kb == 0 else "v[100:103]"
        a("v_mfma_f32_16x16x32_bf16 v[100:103], v[%d:%d], v[%d:%d], %s" % (44 + 4 * kb, 47 + 4 * kb, 20 + 4 * kb, 23 + 4 * kb, c))
    a("""
    s_nop 7
    s_nop 3
    v_mov_b32 v101, %s
    s_mov_b64 exec, 0xffff
    buffer_store_dwordx2 v[100:101], v114, %s, s13 offen sc1
    """ % (TAG, SRD_WS))
    stamp(11)
    if DIAG:
        a("s_cmp_lg_u32 s3, 0")
        a("s_cbranch_scc1 L_end")
        dump(0)
    a("s_endpgm")

    a.label("L_comm")
    if cfg.get("streamtest", 0):
        a("s_barrier")
        a("s_endpgm")
    a("""
    v_mov_b32 v5, 0
    s_mul_i32 s68, s4, 12288
    v_lshlrev_b32 v7, 3, v1
    s_mov_b32 s14, %s
    """ % LOG2E)
    for ip in range(8):
        a("s_add_u32 s%d, s68, %d" % (72 + ip, WS_Q + 1536 * ip))
    a("""
    s_waitcnt lgkmcnt(0)
    s_add_u32 s96, s96, 1
    s_barrier
    """)
    stamp(2)
    a("s_sleep %d" % cfg.get("sleep1", 40))
    QS = cfg.get("qsets", 1)
    def q_issue(s):
        for cb in range(3):
            for ip in range(8):
                r = 10 + 48 * s + 2 * (cb * 8 + ip)
                a("buffer_load_dwordx2 v[%d:%d], v7, %s, s%d offen offset:%d sc1" % (r, r + 1, SRD_WS, 72 + ip, 512 * cb))
    def q_check(s):
        b = 10 + 48 * s
        a("v_xor_b32 v8, %s, v%d" % (TAG, b + 1))
        for k in range(1, 24):
            a("v_xor_b32 v9, %s, v%d" % (TAG, b + 1 + 2 * k))
            a("v_or_b32 v8, v8, v9")
        a("v_cmp_ne_u32 vcc, 0, v8")
    def q_post(s):
        b = 10 + 48 * s
        for cb in range(3):
            r0 = b + 16 * cb
            for ip in range(1, 8):
                a("v_add_f32 v%d, v%d, v%d" % (r0, r0, r0 + 2 * ip))
            a("v_cvt_pk_bf16_f32 v%d, v%d, v%d" % (r0, r0, r0))
        a("v_lshlrev_b32 v6, 1, v1")
        for cb in range(3):
            a("ds_write_b16 v6, v%d offset:%d" % (b + 16 * cb, L_Q + 128 * cb))
    poll_loop("L_pq", QS, 24, q_issue, q_check, q_post, cfg.get("qdelay", 16), 13)
    stamp(3)
    a("""
    s_waitcnt lgkmcnt(0)
    s_barrier
    """)
    stamp(4)
    a("""
    v_lshlrev_b32 v7, 4, v1
    s_lshl_b32 s13, s9, 10
    s_add_u32 s13, s13, %d
    s_lshl_b32 s15, s9, 4
    s_add_u32 s15, s15, %d
    s_lshl_b32 s88, s4, 13
    s_add_u32 s88, s88, %d
    s_add_u32 s89, s88, 4096
    s_lshl_b32 s68, s4, 7
    s_add_u32 s68, s68, %d
    v_and_b32 v8, 7, v1
    v_lshlrev_b32 v8, 4, v8
    v_lshlrev_b32 v9, 2, v1
    v_mov_b32 v6, 0
    s_waitcnt vmcnt(0)
    s_barrier
    """ % (WS_O, WS_ML, WS_O, WS_ML))
    stamp(5)
    T = 120
    for k in range(4):
        a("ds_read_b128 v[%d:%d], v6 offset:%d" % (T + 4 * k, T + 3 + 4 * k, L_ML + 16 * k))
    for w in range(8):
        for cb in range(3):
            a("ds_read_b32 v%d, v9 offset:%d" % (10 + 3 * w + cb, L_OW + 768 * w + 256 * cb))
    a("s_waitcnt lgkmcnt(15)")
    a("v_max_f32 v%d, v%d, v%d" % (T + 20, T, T + 2))
    for w in range(2, 8):
        a("v_max_f32 v%d, v%d, v%d" % (T + 20, T + 20, T + 2 * w))
    for w in range(8):
        a("v_sub_f32 v%d, v%d, v%d" % (T + 2 * w, T + 2 * w, T + 20))
    for w in range(8):
        a("v_mul_f32 v%d, s14, v%d" % (T + 2 * w, T + 2 * w))
    for w in range(8):
        a("v_exp_f32 v%d, v%d" % (T + 2 * w, T + 2 * w))
    a("s_nop 0")
    a("v_mul_f32 v%d, v%d, v%d" % (T + 21, T, T + 1))
    for w in range(1, 8):
        a("v_fmac_f32 v%d, v%d, v%d" % (T + 21, T + 2 * w, T + 1 + 2 * w))
    a("s_waitcnt lgkmcnt(0)")
    for cb in range(3):
        a("v_mul_f32 v%d, v%d, v%d" % (T + 24 + cb, T, 10 + cb))
        for w in range(1, 8):
            a("v_fmac_f32 v%d, v%d, v%d" % (T + 24 + cb, T + 2 * w, 10 + 3 * w + cb))
    a("""
    v_mov_b32 v%d, %s
    v_mov_b32 v%d, %s
    v_mov_b32 v%d, %s
    buffer_store_dwordx4 v[%d:%d], v7, %s, s13 offen sc1
    s_mov_b64 exec, 1
    buffer_store_dwordx4 v[%d:%d], v5, %s, s15 offen sc1
    s_mov_b64 exec, -1
    """ % (T + 27, TAG, T + 22, TAG, T + 23, TAG, T + 24, T + 27, SRD_WS, T + 20, T + 23, SRD_WS))
    stamp(6)
    if cfg.get("sleep2", 8):
        a("s_sleep %d" % cfg.get("sleep2", 8))
    OS = cfg.get("osets", 2)
    def o_issue(s):
        b = 10 + 36 * s
        for ip in range(8):
            a("buffer_load_dwordx4 v[%d:%d], v7, %s, %s offen offset:%d sc1" % (
                b + 4 * ip, b + 3 + 4 * ip, SRD_WS, "s88" if ip < 4 else "s89", 1024 * (ip % 4)))
        a("buffer_load_dwordx4 v[%d:%d], v8, %s, s68 offen sc1" % (b + 32, b + 35, SRD_WS))
    def o_check(s):
        b = 10 + 36 * s
        a("v_xor_b32 v%d, %s, v%d" % (T + 30, TAG, b + 34))
        for ip in range(8):
            a("v_xor_b32 v%d, %s, v%d" % (T + 31, TAG, b + 3 + 4 * ip))
            a("v_or_b32 v%d, v%d, v%d" % (T + 30, T + 30, T + 31))
        a("v_cmp_ne_u32 vcc, 0, v%d" % (T + 30))
    def o_post(s):
        b = 10 + 36 * s
        for ip in range(8):
            a("v_readlane_b32 s%d, v%d, %d" % (72 + ip, b + 32, ip))
            a("v_readlane_b32 s%d, v%d, %d" % (80 + ip, b + 33, ip))
        a("s_nop 1")
        a("v_mov_b32 v%d, s72" % (T + 8))
        for ip in range(1, 8):
            a("v_max_f32 v%d, s%d, v%d" % (T + 8, 72 + ip, T + 8))
        for ip in range(8):
            a("v_sub_f32 v%d, s%d, v%d" % (T + ip, 72 + ip, T + 8))
        for ip in range(8):
            a("v_mul_f32 v%d, s14, v%d" % (T + ip, T + ip))
        for ip in range(8):
            a("v_exp_f32 v%d, v%d" % (T + ip, T + ip))
        a("s_nop 0")
        a("v_mul_f32 v%d, s80, v%d" % (T + 9, T))
        for ip in range(1, 8):
            a("v_fmac_f32 v%d, s%d, v%d" % (T + 9, 80 + ip, T + ip))
        a("v_rcp_f32 v%d, v%d" % (T + 9, T + 9))
        for cb in range(3):
            a("v_mul_f32 v%d, v%d, v%d" % (T + 10 + cb, T, b + cb))
            for ip in range(1, 8):
                a("v_fmac_f32 v%d, v%d, v%d" % (T + 10 + cb, T + ip, b + 4 * ip + cb))
        for cb in range(3):
            a("v_mul_f32 v%d, v%d, v%d" % (T + 10 + cb, T + 10 + cb, T + 9))
            a("v_cvt_pk_bf16_f32 v%d, v%d, v%d" % (T + 10 + cb, T + 10 + cb, T + 10 + cb))
        a("v_lshlrev_b32 v6, 1, v1")
        for cb in range(3):
            a("ds_write_b16 v6, v%d offset:%d" % (T + 10 + cb, L_OBF + 128 * cb))
    poll_loop("L_po", OS, 9, o_issue, o_check, o_post, cfg.get("odelay", 24), 14)
    stamp(7)
    a("""
    s_waitcnt lgkmcnt(0)
    s_barrier
    """)
    stamp(8)
    if DIAG:
        dump(1)
    a("""
    s_cmp_ge_u32 s4, 5
    s_cbranch_scc1 L_end
    s_mul_i32 s13, s5, 20480
    s_lshl_b32 s15, s4, 7
    s_add_u32 s13, s13, s15
    s_add_u32 s13, s13, %d
    v_mul_u32_u24 v7, 640, v2
    v_lshl_add_u32 v7, v3, 3, v7
    """ % WS_OUT)
    for m in range(8):
        a("s_add_u32 s%d, s13, %d" % (72 + m, 2560 * m))
    if cfg.get("sleep3", 8):
        a("s_sleep %d" % cfg.get("sleep3", 8))
    FS = cfg.get("fsets", 4)
    def f_issue(s):
        b = 10 + 16 * s
        for m in range(8):
            a("buffer_load_dwordx2 v[%d:%d], v7, %s, s%d offen sc1" % (b + 2 * m, b + 1 + 2 * m, SRD_WS, 72 + m))
    def f_check(s):
        b = 10 + 16 * s
        a("v_xor_b32 v%d, %s, v%d" % (T + 30, TAG, b + 1))
        for m in range(1, 8):
            a("v_xor_b32 v%d, %s, v%d" % (T + 31, TAG, b + 1 + 2 * m))
            a("v_or_b32 v%d, v%d, v%d" % (T + 30, T + 30, T + 31))
        a("v_cmp_ne_u32 vcc, 0, v%d" % (T + 30))
    def f_post(s):
        b = 10 + 16 * s
        a("v_add_f32 v%d, v%d, v%d" % (T, b, b + 2))
        for m in range(2, 8):
            a("v_add_f32 v%d, v%d, v%d" % (T, T, b + 2 * m))
    poll_loop("L_pf", FS, 8, f_issue, f_check, f_post, cfg.get("fdelay", 12), 15)
    stamp(9)
    a("""
    v_mov_b32 v{1}, v{0}
    s_nop 1
    v_permlane32_swap_b32 v{0}, v{1}
    v_add_f32 v{0}, v{0}, v{1}
    v_mov_b32 v{1}, v{0}
    s_nop 1
    v_permlane16_swap_b32 v{0}, v{1}
    v_add_f32 v{0}, v{0}, v{1}
    v_cvt_pk_bf16_f32 v{0}, v{0}, v{0}
    s_mul_i32 s13, s5, 160
    s_lshl_b32 s15, s4, 5
    s_add_u32 s13, s13, s15
    v_lshlrev_b32 v7, 1, v3
    s_mov_b64 exec, 0xffff
    buffer_store_short v{0}, v7, {2}, s13 offen
    """.format(T, T + 1, SRD_OUT))
    a("""
    s_cmp_lg_u32 s9, 0
    s_cbranch_scc1 L_noepoch
    v_mov_b32 v6, %s
    s_mov_b32 s13, 0x%x
    s_mov_b64 exec, 1
    buffer_store_dword v6, v5, %s, s13 offen sc1
    """ % (TAG, WS_EPOCH, SRD_WS))
    a.label("L_noepoch")
    stamp(10)
    if DIAG:
        dump(1)
    a.label("L_end")
    a("s_endpgm")

    tail = """.section .rodata,"a"
.p2align 6
.amdhsa_kernel standalone__sliding_block_cached__decode_kernel
  .amdhsa_next_free_vgpr 168
  .amdhsa_next_free_sgpr 100
  .amdhsa_accum_offset 168
  .amdhsa_group_segment_fixed_size 0
  .amdhsa_kernarg_size 64
  .amdhsa_user_sgpr_count 2
  .amdhsa_user_sgpr_kernarg_segment_ptr 1
  .amdhsa_system_sgpr_workgroup_id_x 1
.end_amdhsa_kernel
"""
    return hdr + a.text() + tail

if __name__ == "__main__":
    cfg = {}
    out = "standalone__sliding_block_cached__decode.s"
    for arg in sys.argv[1:]:
        k, v = arg.split("=")
        if k == "out":
            out = v
        else:
            cfg[k] = int(v)
    open(out, "w").write(gen(cfg))
    print("wrote", out)
```

```python
import sys

class A:
    def __init__(self):
        self.lines = []
    def __call__(self, s):
        for ln in s.strip("\n").split("\n"):
            if ln.strip():
                self.lines.append("    " + ln.strip())
    def label(self, l):
        self.lines.append(l + ":")
    def text(self):
        return "\n".join(self.lines) + "\n"

def gen(cfg):
    a = A()
    NW = 9
    L_MISC = 0
    L_Q = L_MISC + 64
    L_ML = L_MISC + 512
    L_OW = L_MISC + 1024
    L_OBF = L_MISC + 1024 + 6144
    L_WQ = 8192
    L_WO = L_WQ + 30720
    L_V = L_WO + 30720
    LDS_TOTAL = L_V + 49152
    WS_Q = 0
    WS_O = 0x60000
    WS_ML = 0xA0000
    WS_OUT = 0xA2000
    WS_EPOCH = 0xF0000
    FOFF = 0x100000
    WS_BYTES = 0x200000
    SRD_WSF = "s[92:95]"
    FAST = cfg.get("fast", 0)
    SRD_X, SRD_K, SRD_V, SRD_WQ, SRD_WO, SRD_OUT, SRD_DBG, SRD_WS = [
        "s[%d:%d]" % (r, r + 3) for r in (32, 36, 40, 44, 48, 52, 56, 60)]
    POLL_MAX = 100000
    LOG2E = "0x3fb8aa3b"
    SCALE = "0x3d93cd3a"
    TAG = "s96"
    W = cfg.get("window", 3)
    PRE = cfg.get("pre", 3)
    WOPRE = cfg.get("wopre", 0)
    WOMID = cfg.get("womid", 2)
    NT = " nt" if cfg.get("nt", 1) else ""

    DIAG = cfg.get("diag", 0)
    if DIAG:
        WS_BYTES = 0x300000
    VD = 167
    def stamp(n):
        if DIAG:
            a("""
            s_memrealtime s[98:99]
            s_waitcnt lgkmcnt(0)
            v_writelane_b32 v%d, s98, %d
            """ % (VD, n))
    def count(n, sreg):
        if DIAG:
            a("v_writelane_b32 v%d, %s, %d" % (VD, sreg, n))
    def dump(role):
        if DIAG:
            a("""
            s_mov_b64 exec, -1
            s_lshl_b32 s97, s2, 9
            s_add_u32 s97, s97, %d
            v_lshlrev_b32 v%d, 2, v1
            buffer_store_dword v%d, v%d, %s, s97 offen
            """ % (0x200000 + 256 * role, VD - 1, VD, VD - 1, SRD_WS))

    def poll_loop(name, nsets, nloads, issue, check, post, delay, cnt_slot, nfast=0, after_issue=None):
        for s in range(nsets):
            issue(s, nfast > 0)
            if s < nsets - 1 and delay:
                a("s_sleep %d" % delay)
        if after_issue:
            a(after_issue)
        a("s_mov_b32 s69, 0")
        phases = ([("f", nfast)] if nfast else []) + [("s", POLL_MAX)]
        for ph, lim in phases:
            a.label(name + "_top" + ph)
            for s in range(nsets):
                a("s_waitcnt vmcnt(%d)" % ((nsets - 1) * nloads))
                check(s)
                a("s_cbranch_vccz %s_ok%d" % (name, s))
                a("s_add_u32 s69, s69, 1")
                if nsets == 1:
                    a("s_sleep 2")
                issue(s, ph == "f")
            a("""
            s_cmp_lt_u32 s69, %d
            s_cbranch_scc1 %s_top%s
            """ % (lim, name, ph))
        a("s_waitcnt vmcnt(0)")
        for s in range(nsets):
            a.label("%s_ok%d" % (name, s))
            count(cnt_slot, "s69")
            post(s)
            if s < nsets - 1:
                a("s_branch %s_done" % name)
        a.label(name + "_done")

    hdr = """; sliding-window decode attention, one launch, 256 workgroups x 9 waves
; @launch grid=(256,1,1) block=(%d,1,1) lds=%d
.amdgcn_target "amdgcn-amd-amdhsa--gfx950"
.text
.globl standalone__sliding_block_cached__decode_kernel
.p2align 8
.type standalone__sliding_block_cached__decode_kernel,@function
standalone__sliding_block_cached__decode_kernel:
""" % (NW * 64, LDS_TOTAL)

    a("""
    s_cmp_ge_u32 s2, 256
    s_cbranch_scc1 L_end
    s_load_dwordx16 s[16:31], s[0:1], 0
    v_and_b32 v1, 63, v0
    v_lshrrev_b32 v4, 6, v0
    v_lshrrev_b32 v2, 4, v1
    v_readfirstlane_b32 s3, v4
    v_and_b32 v3, 15, v1
    s_and_b32 s4, s2, 7
    s_lshr_b32 s5, s2, 3
    s_and_b32 s6, s5, 3
    s_lshl_b32 s4, s4, 2
    s_add_u32 s4, s4, s6
    s_lshr_b32 s5, s5, 2
    s_lshl_b32 s9, s4, 3
    s_add_u32 s9, s9, s5
    s_waitcnt lgkmcnt(0)
    s_load_dword s96, s[30:31], 0x%x
    """ % WS_EPOCH)
    sizes = [1280, 50331648, 50331648, 7864320, 7864320, 1280, 256, WS_BYTES]
    for n, sz in enumerate(sizes):
        r = 32 + 4 * n
        a("s_mov_b32 s%d, s%d" % (r, 16 + 2 * n))
        a("s_and_b32 s%d, s%d, 0xffff" % (r + 1, 17 + 2 * n))
        a("s_mov_b32 s%d, 0x%x" % (r + 2, sz))
        a("s_mov_b32 s%d, 0x20000" % (r + 3))
    if FAST:
      a("""
    s_add_u32 s92, s30, 0x%x
    s_addc_u32 s93, s31, 0
    s_and_b32 s93, s93, 0xffff
    s_mov_b32 s94, 0x%x
    s_mov_b32 s95, 0x20000
    """ % (FOFF, FOFF))
    if DIAG:
        a("v_mov_b32 v%d, 0" % VD)
    stamp(0)
    a("""
    s_cmp_eq_u32 s3, 8
    s_cbranch_scc1 L_comm
    """)

    a("""
    s_mul_i32 s7, s5, 160
    s_mul_i32 s8, s5, 983040
    s_mul_i32 s10, s4, 384
    s_add_u32 s8, s8, s10
    s_lshl_b32 s10, s5, 7
    s_lshl_b32 s11, s3, 4
    s_add_u32 s10, s10, s11
    s_add_u32 s10, s10, 3072
    s_mul_i32 s10, s10, 384
    s_mul_i32 s11, s4, 1572864
    s_add_u32 s10, s10, s11
    s_add_u32 s11, s10, 4096
    s_mul_i32 s12, s4, 245760
    s_add_u32 s12, s12, s7
    """)
    for m in range(4):
        a("""
        s_add_u32 s13, s3, %d
        s_min_u32 s13, s13, 29
        s_lshl_b32 s14, s13, 6
        v_add_u32 v6, s14, v1
        v_mul_u32_u24 v7, 2731, v6
        v_lshrrev_b32 v7, 16, v7
        v_mul_u32_u24 v8, 24, v7
        v_sub_u32 v8, v6, v8
        v_mul_u32_u24 v7, 12288, v7
        v_lshl_add_u32 v%d, v8, 4, v7
        s_lshl_b32 s%d, s13, 10
        s_add_u32 m0, s%d, %d
        s_nop 0
        buffer_load_dwordx4 v%d, %s, s8 offen%s lds
        """ % (8 * m, 120 + m, 64 + m, 64 + m, L_WQ, 120 + m, SRD_WQ, NT))
    a("v_lshlrev_b32 v5, 3, v2")
    for kb in range(5):
        a("buffer_load_dwordx2 v[%d:%d], v5, %s, s7 offen offset:%d" % (10 + 2 * kb, 11 + 2 * kb, SRD_X, 32 * kb))
    if cfg.get("bar0", 1):
        a("s_barrier")
    a("""
    v_mul_u32_u24 v5, 384, v3
    v_lshl_add_u32 v5, v2, 4, v5
    v_lshlrev_b32 v9, 4, v1
    """)
    def k_load(ks):
        a("buffer_load_dwordx4 v[%d:%d], v5, %s, s10 offen offset:%d%s" % (20 + 4 * ks, 23 + 4 * ks, SRD_K, 64 * ks, NT))
    def v_load(n):
        if n < 4:
            a("s_mov_b32 m0, s70")
            a("s_nop 0")
            a("buffer_load_dwordx4 v9, %s, s10 offen offset:%d%s lds" % (SRD_V, 1024 * n, NT))
        else:
            a("s_add_u32 m0, s70, 4096")
            a("s_nop 0")
            a("buffer_load_dwordx4 v9, %s, s11 offen offset:%d%s lds" % (SRD_V, 1024 * (n - 4), NT))
    def wo_load(m):
        a("s_add_u32 m0, s%d, %d" % (64 + m, L_WO))
        a("s_nop 0")
        a("buffer_load_dwordx4 v%d, %s, s12 offen%s lds" % (124 + m, SRD_WO, NT))
    for ks in range(PRE):
        k_load(ks)
    for m in range(4):
        a("""
        s_lshr_b32 s14, s%d, 4
        v_add_u32 v6, s14, v1
        v_mul_u32_u24 v7, 6554, v6
        v_lshrrev_b32 v7, 16, v7
        v_mul_u32_u24 v8, 10, v7
        v_sub_u32 v8, v6, v8
        v_mul_u32_u24 v7, 1280, v7
        v_lshl_add_u32 v%d, v8, 4, v7
        """ % (64 + m, 124 + m))
    a("""
    v_lshrrev_b32 v6, 2, v3
    v_and_b32 v7, 3, v3
    v_lshl_add_u32 v6, v2, 2, v6
    v_mul_u32_u24 v110, 384, v6
    v_lshl_add_u32 v110, v7, 3, v110
    s_mul_i32 s70, s3, 6144
    s_add_u32 s70, s70, %d
    s_add_u32 s13, s3, 8
    s_cmp_ge_u32 s13, 12
    s_cselect_b32 s14, 12, 0
    s_sub_u32 s13, s13, s14
    s_lshl_b32 s14, s3, 5
    s_lshl_b32 s15, s13, 5
    v_add_u32 v112, s14, v110
    v_add_u32 v113, s15, v110
    s_mul_i32 s68, s9, 1536
    v_lshlrev_b32 v114, 3, v3
    s_lshl_b32 s14, s3, 7
    s_lshl_b32 s15, s13, 7
    v_add_u32 v115, s15, v114
    v_add_u32 v114, s14, v114
    s_waitcnt lgkmcnt(0)
    s_add_u32 s96, s96, 1
    s_waitcnt vmcnt(%d)
    """ % (L_V, PRE))
    if cfg.get("streamtest", 0):
        SW = cfg.get("sw", 0)
        stamp(1)
        seq = [("k", ks) for ks in range(PRE, 6)] + [("v", n) for n in range(6)] + [("o", m) for m in range(4)]
        for kind, n in seq:
            if SW:
                a("s_waitcnt vmcnt(%d)" % (SW - 1))
            {"k": k_load, "v": v_load, "o": wo_load}[kind](n)
        a("s_waitcnt vmcnt(10)")
        stamp(2)
        a("s_waitcnt vmcnt(4)")
        stamp(3)
        a("s_waitcnt vmcnt(0)")
        stamp(4)
        a("s_barrier")
        stamp(5)
        a("s_cmp_lg_u32 s3, 0")
        a("s_cbranch_scc1 L_end")
        dump(0)
        a("s_endpgm")
    stamp(1)
    a("s_barrier")
    stamp(2)
    for kb in range(5):
        a("ds_read_b64_tr_b16 v[%d:%d], v112 offset:%d" % (80 + 2 * kb, 81 + 2 * kb, L_WQ + 6144 * kb))
    for kb in range(5):
        a("ds_read_b64_tr_b16 v[%d:%d], v113 offset:%d" % (90 + 2 * kb, 91 + 2 * kb, L_WQ + 6144 * kb))
    a("s_waitcnt lgkmcnt(5)")
    for kb in range(5):
        c = "0" if kb == 0 else "v[100:103]"
        a("v_mfma_f32_16x16x16_bf16 v[100:103], v[%d:%d], v[%d:%d], %s" % (10 + 2 * kb, 11 + 2 * kb, 80 + 2 * kb, 81 + 2 * kb, c))
    a("s_waitcnt lgkmcnt(0)")
    for kb in range(5):
        c = "0" if kb == 0 else "v[104:107]"
        a("v_mfma_f32_16x16x16_bf16 v[104:107], v[%d:%d], v[%d:%d], %s" % (10 + 2 * kb, 11 + 2 * kb, 90 + 2 * kb, 91 + 2 * kb, c))
    a("""
    s_nop 7
    s_nop 3
    v_mov_b32 v101, %s
    v_mov_b32 v105, %s
    s_mov_b64 exec, 0xffff
    """ % (TAG, TAG))
    if FAST:
        a("""
        buffer_store_dwordx2 v[100:101], v114, %s, s68 offen
        buffer_store_dwordx2 v[104:105], v115, %s, s68 offen
        """ % (SRD_WSF, SRD_WSF))
    a("""
    buffer_store_dwordx2 v[100:101], v114, %s, s68 offen sc1
    buffer_store_dwordx2 v[104:105], v115, %s, s68 offen sc1
    s_mov_b64 exec, -1
    """ % (SRD_WS, SRD_WS))
    stamp(3)
    if cfg.get("bar15", 0):
        a("s_barrier")
    seq = [("k", ks) for ks in range(PRE, 6)] + [("v", n) for n in range(6)] + [("o", m) for m in range(WOPRE)]
    for kind, n in seq:
        a("s_waitcnt vmcnt(%d)" % (W - 1))
        {"k": k_load, "v": v_load, "o": wo_load}[kind](n)
    stamp(4)
    a("s_barrier")
    stamp(5)
    a("v_lshlrev_b32 v6, 4, v2")
    for ks in range(6):
        a("ds_read_b128 v[%d:%d], v6 offset:%d" % (44 + 4 * ks, 47 + 4 * ks, L_Q + 64 * ks))
    a("s_waitcnt lgkmcnt(0)")
    a("s_waitcnt vmcnt(%d)" % (6 + WOPRE))
    for ks in range(6):
        c = "0" if ks == 0 else "v[100:103]"
        a("v_mfma_f32_16x16x32_bf16 v[100:103], v[%d:%d], v[%d:%d], %s" % (20 + 4 * ks, 23 + 4 * ks, 44 + 4 * ks, 47 + 4 * ks, c))
    for m in range(WOPRE, WOMID):
        a("s_waitcnt vmcnt(%d)" % (W - 1))
        wo_load(m)
    a("""
    s_nop 7
    s_nop 3
    s_mov_b32 s13, %s
    s_mov_b32 s14, %s
    s_mov_b32 s15, 0xffff0000
    v_cvt_pk_bf16_f32 v104, v100, v101
    v_cvt_pk_bf16_f32 v105, v102, v103
    v_lshlrev_b32 v100, 16, v104
    v_and_b32 v101, s15, v104
    v_lshlrev_b32 v102, 16, v105
    v_and_b32 v103, s15, v105
    v_mul_f32 v100, s13, v100
    v_mul_f32 v101, s13, v101
    v_mul_f32 v102, s13, v102
    v_mul_f32 v103, s13, v103
    v_cvt_pk_bf16_f32 v104, v100, v101
    v_cvt_pk_bf16_f32 v105, v102, v103
    v_lshlrev_b32 v100, 16, v104
    v_and_b32 v101, s15, v104
    v_lshlrev_b32 v102, 16, v105
    v_and_b32 v103, s15, v105
    v_max_f32 v104, v100, v101
    v_max3_f32 v104, v104, v102, v103
    s_nop 0
    v_readlane_b32 s72, v104, 0
    v_readlane_b32 s73, v104, 16
    v_readlane_b32 s74, v104, 32
    v_readlane_b32 s75, v104, 48
    s_nop 1
    v_mov_b32 v106, s72
    v_max_f32 v106, s73, v106
    v_max_f32 v106, s74, v106
    v_max_f32 v106, s75, v106
    v_sub_f32 v100, v100, v106
    v_sub_f32 v101, v101, v106
    v_sub_f32 v102, v102, v106
    v_sub_f32 v103, v103, v106
    v_mul_f32 v100, s14, v100
    v_mul_f32 v101, s14, v101
    v_mul_f32 v102, s14, v102
    v_mul_f32 v103, s14, v103
    v_exp_f32 v100, v100
    v_exp_f32 v101, v101
    v_exp_f32 v102, v102
    v_exp_f32 v103, v103
    s_nop 0
    v_add_f32 v104, v100, v101
    v_add_f32 v105, v102, v103
    v_add_f32 v104, v104, v105
    v_cvt_pk_bf16_f32 v108, v100, v101
    v_cvt_pk_bf16_f32 v109, v102, v103
    v_readlane_b32 s72, v104, 0
    v_readlane_b32 s73, v104, 16
    v_readlane_b32 s74, v104, 32
    v_readlane_b32 s75, v104, 48
    s_nop 1
    v_mov_b32 v107, s72
    v_add_f32 v107, s73, v107
    v_add_f32 v107, s74, v107
    v_add_f32 v107, s75, v107
    """ % (SCALE, LOG2E))
    PVF = cfg.get("pvfirst", 1)
    nwo = max(WOPRE, WOMID)
    if not PVF:
        for m in range(nwo, 4):
            a("s_waitcnt vmcnt(%d)" % (W - 1))
            wo_load(m)
        nwo = 4
    stamp(6)
    a("s_waitcnt vmcnt(%d)" % nwo)
    stamp(7)
    a("v_add_u32 v112, s70, v110")
    for t in range(12):
        a("ds_read_b64_tr_b16 v[%d:%d], v112 offset:%d" % (20 + 2 * t, 21 + 2 * t, 32 * t))
    for t in range(12):
        a("s_waitcnt lgkmcnt(%d)" % (11 - t))
        a("v_mfma_f32_16x16x16_bf16 v[%d:%d], v[108:109], v[%d:%d], 0" % (44 + 4 * t, 47 + 4 * t, 20 + 2 * t, 21 + 2 * t))
    for m in range(nwo, 4):
        wo_load(m)
    a("""
    s_mul_i32 s13, s3, 768
    v_lshlrev_b32 v6, 2, v3
    v_add_u32 v6, s13, v6
    s_lshl_b32 s13, s3, 3
    v_mov_b32 v7, s13
    s_nop 4
    s_mov_b64 exec, 0xffff
    """)
    for t in range(12):
        a("ds_write_b32 v6, v%d offset:%d" % (44 + 4 * t, L_OW + 64 * t))
    a("""
    s_mov_b64 exec, 1
    ds_write_b64 v7, v[106:107] offset:%d
    s_mov_b64 exec, -1
    s_waitcnt lgkmcnt(0)
    """ % L_ML)
    stamp(8)
    a("s_barrier")
    a("""
    v_lshrrev_b32 v6, 2, v3
    v_and_b32 v7, 3, v3
    v_lshl_add_u32 v6, v2, 3, v6
    v_mul_u32_u24 v112, 160, v6
    v_lshl_add_u32 v112, v7, 3, v112
    s_lshl_b32 s13, s3, 5
    v_add_u32 v112, s13, v112
    v_lshlrev_b32 v6, 4, v2
    s_lshl_b32 s13, s5, 5
    s_add_u32 s13, s13, s4
    s_mul_i32 s13, s13, 640
    s_lshl_b32 s14, s3, 7
    s_add_u32 s13, s13, s14
    s_add_u32 s13, s13, %d
    v_lshlrev_b32 v114, 3, v3
    s_waitcnt vmcnt(0)
    """ % WS_OUT)
    stamp(9)
    a("s_barrier")
    stamp(10)
    a("""
    s_cmp_ge_u32 s3, 5
    s_cbranch_scc1 L_end
    """)
    for kb in range(6):
        a("ds_read_b128 v[%d:%d], v6 offset:%d" % (44 + 4 * kb, 47 + 4 * kb, L_OBF + 64 * kb))
        a("ds_read_b64_tr_b16 v[%d:%d], v112 offset:%d" % (20 + 4 * kb, 21 + 4 * kb, L_WO + 5120 * kb))
        a("ds_read_b64_tr_b16 v[%d:%d], v112 offset:%d" % (22 + 4 * kb, 23 + 4 * kb, L_WO + 5120 * kb + 640))
    for kb in range(6):
        a("s_waitcnt lgkmcnt(%d)" % (15 - 3 * kb))
        c = "0" if kb == 0 else "v[100:103]"
        a("v_mfma_f32_16x16x32_bf16 v[100:103], v[%d:%d], v[%d:%d], %s" % (44 + 4 * kb, 47 + 4 * kb, 20 + 4 * kb, 23 + 4 * kb, c))
    a("""
    s_nop 7
    s_nop 3
    v_mov_b32 v101, %s
    s_mov_b64 exec, 0xffff
    buffer_store_dwordx2 v[100:101], v114, %s, s13 offen sc1
    """ % (TAG, SRD_WS))
    stamp(11)
    if DIAG:
        a("s_cmp_lg_u32 s3, 0")
        a("s_cbranch_scc1 L_end")
        dump(0)
    a("s_endpgm")

    a.label("L_comm")
    if cfg.get("streamtest", 0):
        a("s_barrier")
        a("s_endpgm")
    a("""
    v_mov_b32 v5, 0
    s_mul_i32 s68, s4, 12288
    v_lshlrev_b32 v7, 3, v1
    s_mov_b32 s14, %s
    """ % LOG2E)
    for ip in range(8):
        a("s_add_u32 s%d, s68, %d" % (72 + ip, WS_Q + 1536 * ip))
    if cfg.get("warm", 1):
        a("""
        s_lshl_b32 s10, s5, 7
        s_add_u32 s10, s10, 3072
        s_mul_i32 s10, s10, 384
        s_mul_i32 s11, s4, 1572864
        s_add_u32 s10, s10, s11
        s_mul_i32 s12, s4, 245760
        s_add_u32 s13, s12, 245000
        buffer_load_dword v100, v5, %s, s10 offen
        buffer_load_dword v101, v5, %s, s12 offen
        buffer_load_dword v102, v5, %s, s13 offen
        buffer_load_dword v103, v5, %s, s68 offen
        buffer_load_dword v105, v5, %s, 0 offen
        """ % (SRD_V, SRD_WO, SRD_WO, SRD_WS, SRD_OUT))
    if cfg.get("warm", 1) >= 2:
        a("""
        v_lshlrev_b32 v106, 12, v1
        s_mov_b64 exec, 0xfff
        buffer_load_dword v107, v106, %s, s10 offen nt
        s_mov_b32 exec_hi, 0x0fffffff
        s_mov_b32 exec_lo, -1
        buffer_load_dword v108, v106, %s, s12 offen nt
        s_mov_b64 exec, -1
        """ % (SRD_V, SRD_WO))
    if cfg.get("bar0", 1):
        a("s_barrier")
    a("""
    s_waitcnt lgkmcnt(0)
    s_add_u32 s96, s96, 1
    s_barrier
    """)
    stamp(2)
    a("s_sleep %d" % cfg.get("sleep1", 40))
    QS = cfg.get("qsets", 1)
    def q_issue(s, fast):
        for cb in range(3):
            for ip in range(8):
                r = 10 + 48 * s + 2 * (cb * 8 + ip)
                a("buffer_load_dwordx2 v[%d:%d], v7, %s, s%d offen offset:%d %s" % (r, r + 1, SRD_WSF if fast else SRD_WS, 72 + ip, 512 * cb, "sc0" if fast else "sc1"))
    def q_check(s):
        b = 10 + 48 * s
        a("v_xor_b32 v8, %s, v%d" % (TAG, b + 1))
        for k in range(1, 24):
            a("v_xor_b32 v9, %s, v%d" % (TAG, b + 1 + 2 * k))
            a("v_or_b32 v8, v8, v9")
        a("v_cmp_ne_u32 vcc, 0, v8")
    def q_post(s):
        b = 10 + 48 * s
        for cb in range(3):
            r0 = b + 16 * cb
            for ip in range(1, 8):
                a("v_add_f32 v%d, v%d, v%d" % (r0, r0, r0 + 2 * ip))
            a("v_cvt_pk_bf16_f32 v%d, v%d, v%d" % (r0, r0, r0))
        a("v_lshlrev_b32 v6, 1, v1")
        for cb in range(3):
            a("ds_write_b16 v6, v%d offset:%d" % (b + 16 * cb, L_Q + 128 * cb))
    poll_loop("L_pq", QS, 24, q_issue, q_check, q_post, cfg.get("qdelay", 16), 13, cfg.get("qfast", 3) if FAST else 0, "s_barrier" if cfg.get("bar15", 0) else None)
    stamp(3)
    a("""
    s_waitcnt lgkmcnt(0)
    s_barrier
    """)
    stamp(4)
    a("""
    v_lshlrev_b32 v7, 4, v1
    s_lshl_b32 s13, s9, 10
    s_add_u32 s13, s13, %d
    s_lshl_b32 s15, s9, 4
    s_add_u32 s15, s15, %d
    s_lshl_b32 s88, s4, 13
    s_add_u32 s88, s88, %d
    s_add_u32 s89, s88, 4096
    s_lshl_b32 s68, s4, 7
    s_add_u32 s68, s68, %d
    v_and_b32 v8, 7, v1
    v_lshlrev_b32 v8, 4, v8
    v_lshlrev_b32 v9, 2, v1
    v_mov_b32 v6, 0
    s_waitcnt vmcnt(0)
    s_barrier
    """ % (WS_O, WS_ML, WS_O, WS_ML))
    stamp(5)
    T = 120
    for k in range(4):
        a("ds_read_b128 v[%d:%d], v6 offset:%d" % (T + 4 * k, T + 3 + 4 * k, L_ML + 16 * k))
    for w in range(8):
        for cb in range(3):
            a("ds_read_b32 v%d, v9 offset:%d" % (10 + 3 * w + cb, L_OW + 768 * w + 256 * cb))
    a("s_waitcnt lgkmcnt(15)")
    a("v_max_f32 v%d, v%d, v%d" % (T + 20, T, T + 2))
    for w in range(2, 8):
        a("v_max_f32 v%d, v%d, v%d" % (T + 20, T + 20, T + 2 * w))
    for w in range(8):
        a("v_sub_f32 v%d, v%d, v%d" % (T + 2 * w, T + 2 * w, T + 20))
    for w in range(8):
        a("v_mul_f32 v%d, s14, v%d" % (T + 2 * w, T + 2 * w))
    for w in range(8):
        a("v_exp_f32 v%d, v%d" % (T + 2 * w, T + 2 * w))
    a("s_nop 0")
    a("v_mul_f32 v%d, v%d, v%d" % (T + 21, T, T + 1))
    for w in range(1, 8):
        a("v_fmac_f32 v%d, v%d, v%d" % (T + 21, T + 2 * w, T + 1 + 2 * w))
    a("s_waitcnt lgkmcnt(0)")
    for cb in range(3):
        a("v_mul_f32 v%d, v%d, v%d" % (T + 24 + cb, T, 10 + cb))
        for w in range(1, 8):
            a("v_fmac_f32 v%d, v%d, v%d" % (T + 24 + cb, T + 2 * w, 10 + 3 * w + cb))
    a("""
    v_mov_b32 v%d, %s
    v_mov_b32 v%d, %s
    v_mov_b32 v%d, %s
    """ % (T + 27, TAG, T + 22, TAG, T + 23, TAG))
    for srd, fl in ([(SRD_WSF, "")] if FAST else []) + [(SRD_WS, "sc1")]:
        a("""
        buffer_store_dwordx4 v[%d:%d], v7, %s, s13 offen %s
        s_mov_b64 exec, 1
        buffer_store_dwordx4 v[%d:%d], v5, %s, s15 offen %s
        s_mov_b64 exec, -1
        """ % (T + 24, T + 27, srd, fl, T + 20, T + 23, srd, fl))
    stamp(6)
    if cfg.get("sleep2", 8):
        a("s_sleep %d" % cfg.get("sleep2", 8))
    OS = cfg.get("osets", 2)
    def o_issue(s, fast):
        b = 10 + 36 * s
        srd = SRD_WSF if fast else SRD_WS
        fl = "sc0" if fast else "sc1"
        for ip in range(8):
            a("buffer_load_dwordx4 v[%d:%d], v7, %s, %s offen offset:%d %s" % (
                b + 4 * ip, b + 3 + 4 * ip, srd, "s88" if ip < 4 else "s89", 1024 * (ip % 4), fl))
        a("buffer_load_dwordx4 v[%d:%d], v8, %s, s68 offen %s" % (b + 32, b + 35, srd, fl))
    def o_check(s):
        b = 10 + 36 * s
        a("v_xor_b32 v%d, %s, v%d" % (T + 30, TAG, b + 34))
        for ip in range(8):
            a("v_xor_b32 v%d, %s, v%d" % (T + 31, TAG, b + 3 + 4 * ip))
            a("v_or_b32 v%d, v%d, v%d" % (T + 30, T + 30, T + 31))
        a("v_cmp_ne_u32 vcc, 0, v%d" % (T + 30))
    def o_post(s):
        b = 10 + 36 * s
        for ip in range(8):
            a("v_readlane_b32 s%d, v%d, %d" % (72 + ip, b + 32, ip))
            a("v_readlane_b32 s%d, v%d, %d" % (80 + ip, b + 33, ip))
        a("s_nop 1")
        a("v_mov_b32 v%d, s72" % (T + 8))
        for ip in range(1, 8):
            a("v_max_f32 v%d, s%d, v%d" % (T + 8, 72 + ip, T + 8))
        for ip in range(8):
            a("v_sub_f32 v%d, s%d, v%d" % (T + ip, 72 + ip, T + 8))
        for ip in range(8):
            a("v_mul_f32 v%d, s14, v%d" % (T + ip, T + ip))
        for ip in range(8):
            a("v_exp_f32 v%d, v%d" % (T + ip, T + ip))
        a("s_nop 0")
        a("v_mul_f32 v%d, s80, v%d" % (T + 9, T))
        for ip in range(1, 8):
            a("v_fmac_f32 v%d, s%d, v%d" % (T + 9, 80 + ip, T + ip))
        a("v_rcp_f32 v%d, v%d" % (T + 9, T + 9))
        for cb in range(3):
            a("v_mul_f32 v%d, v%d, v%d" % (T + 10 + cb, T, b + cb))
            for ip in range(1, 8):
                a("v_fmac_f32 v%d, v%d, v%d" % (T + 10 + cb, T + ip, b + 4 * ip + cb))
        for cb in range(3):
            a("v_mul_f32 v%d, v%d, v%d" % (T + 10 + cb, T + 10 + cb, T + 9))
            a("v_cvt_pk_bf16_f32 v%d, v%d, v%d" % (T + 10 + cb, T + 10 + cb, T + 10 + cb))
        a("v_lshlrev_b32 v6, 1, v1")
        for cb in range(3):
            a("ds_write_b16 v6, v%d offset:%d" % (T + 10 + cb, L_OBF + 128 * cb))
    poll_loop("L_po", OS, 9, o_issue, o_check, o_post, cfg.get("odelay", 24), 14, cfg.get("ofast", 6) if FAST else 0)
    stamp(7)
    a("""
    s_waitcnt lgkmcnt(0)
    s_barrier
    """)
    stamp(8)
    if DIAG:
        dump(1)
    a("""
    s_cmp_ge_u32 s4, 5
    s_cbranch_scc1 L_end
    s_mul_i32 s13, s5, 20480
    s_lshl_b32 s15, s4, 7
    s_add_u32 s13, s13, s15
    s_add_u32 s13, s13, %d
    v_mul_u32_u24 v7, 640, v2
    v_lshl_add_u32 v7, v3, 3, v7
    """ % WS_OUT)
    for m in range(8):
        a("s_add_u32 s%d, s13, %d" % (72 + m, 2560 * m))
    if cfg.get("sleep3", 8):
        a("s_sleep %d" % cfg.get("sleep3", 8))
    FS = cfg.get("fsets", 4)
    def f_issue(s, fast):
        b = 10 + 16 * s
        for m in range(8):
            a("buffer_load_dwordx2 v[%d:%d], v7, %s, s%d offen sc1" % (b + 2 * m, b + 1 + 2 * m, SRD_WS, 72 + m))
    def f_check(s):
        b = 10 + 16 * s
        a("v_xor_b32 v%d, %s, v%d" % (T + 30, TAG, b + 1))
        for m in range(1, 8):
            a("v_xor_b32 v%d, %s, v%d" % (T + 31, TAG, b + 1 + 2 * m))
            a("v_or_b32 v%d, v%d, v%d" % (T + 30, T + 30, T + 31))
        a("v_cmp_ne_u32 vcc, 0, v%d" % (T + 30))
    def f_post(s):
        b = 10 + 16 * s
        a("v_add_f32 v%d, v%d, v%d" % (T, b, b + 2))
        for m in range(2, 8):
            a("v_add_f32 v%d, v%d, v%d" % (T, T, b + 2 * m))
    poll_loop("L_pf", FS, 8, f_issue, f_check, f_post, cfg.get("fdelay", 12), 15)
    stamp(9)
    a("""
    v_mov_b32 v{1}, v{0}
    s_nop 1
    v_permlane32_swap_b32 v{0}, v{1}
    v_add_f32 v{0}, v{0}, v{1}
    v_mov_b32 v{1}, v{0}
    s_nop 1
    v_permlane16_swap_b32 v{0}, v{1}
    v_add_f32 v{0}, v{0}, v{1}
    v_cvt_pk_bf16_f32 v{0}, v{0}, v{0}
    s_mul_i32 s13, s5, 160
    s_lshl_b32 s15, s4, 5
    s_add_u32 s13, s13, s15
    v_lshlrev_b32 v7, 1, v3
    s_mov_b64 exec, 0xffff
    buffer_store_short v{0}, v7, {2}, s13 offen
    """.format(T, T + 1, SRD_OUT))
    a("""
    s_cmp_lg_u32 s9, 0
    s_cbranch_scc1 L_noepoch
    v_mov_b32 v6, %s
    s_mov_b32 s13, 0x%x
    s_mov_b64 exec, 1
    buffer_store_dword v6, v5, %s, s13 offen sc1
    """ % (TAG, WS_EPOCH, SRD_WS))
    stamp(10)
    if DIAG and cfg.get("dbgdump", 0):
        a("""
        s_mov_b64 exec, 0xffff
        v_readlane_b32 s13, v%d, 0
        s_nop 1
        v_subrev_u32 v%d, s13, v%d
        v_lshlrev_b32 v%d, 2, v1
        buffer_store_dword v%d, v%d, %s, 0 offen
        """ % (VD, VD, VD, VD - 1, VD, VD - 1, SRD_DBG))
    a.label("L_noepoch")
    stamp(10)
    if DIAG:
        dump(1)
    a.label("L_end")
    a("s_endpgm")

    tail = """.section .rodata,"a"
.p2align 6
.amdhsa_kernel standalone__sliding_block_cached__decode_kernel
  .amdhsa_next_free_vgpr 168
  .amdhsa_next_free_sgpr 100
  .amdhsa_accum_offset 168
  .amdhsa_group_segment_fixed_size 0
  .amdhsa_kernarg_size 64
  .amdhsa_user_sgpr_count 2
  .amdhsa_user_sgpr_kernarg_segment_ptr 1
  .amdhsa_system_sgpr_workgroup_id_x 1
.end_amdhsa_kernel
"""
    return hdr + a.text() + tail

if __name__ == "__main__":
    cfg = {}
    out = "standalone__sliding_block_cached__decode.s"
    for arg in sys.argv[1:]:
        k, v = arg.split("=")
        if k == "out":
            out = v
        else:
            cfg[k] = int(v)
    open(out, "w").write(gen(cfg))
    print("wrote", out)
```

```python
import sys

class A:
    def __init__(self):
        self.lines = []
    def __call__(self, s):
        for ln in s.strip("\n").split("\n"):
            if ln.strip():
                self.lines.append("    " + ln.strip())
    def label(self, l):
        self.lines.append(l + ":")
    def text(self):
        return "\n".join(self.lines) + "\n"

def gen(cfg):
    a = A()
    NW = 9
    L_MISC = 0
    L_Q = L_MISC + 64
    L_ML = L_MISC + 512
    L_OW = L_MISC + 1024
    L_OBF = L_MISC + 1024 + 6144
    L_WQ = 8192
    L_WO = L_WQ + 30720
    L_V = L_WO + 30720
    LDS_TOTAL = L_V + 49152
    WS_Q = 0
    WS_O = 0x60000
    WS_ML = 0xA0000
    WS_OUT = 0xA2000
    WS_EPOCH = 0xF0000
    FOFF = 0x100000
    WS_BYTES = 0x200000
    SRD_WSF = "s[92:95]"
    FAST = cfg.get("fast", 0)
    SRD_X, SRD_K, SRD_V, SRD_WQ, SRD_WO, SRD_OUT, SRD_DBG, SRD_WS = [
        "s[%d:%d]" % (r, r + 3) for r in (32, 36, 40, 44, 48, 52, 56, 60)]
    POLL_MAX = 100000
    LOG2E = "0x3fb8aa3b"
    SCALE = "0x3d93cd3a"
    TAG = "s96"
    W = cfg.get("window", 3)
    PRE = cfg.get("pre", 3)
    WOPRE = cfg.get("wopre", 0)
    WOMID = cfg.get("womid", 2)
    NT = " nt" if cfg.get("nt", 1) else ""

    DIAG = cfg.get("diag", 0)
    if DIAG:
        WS_BYTES = 0x300000
    VD = 167
    def stamp(n):
        if DIAG:
            a("""
            s_memrealtime s[98:99]
            s_waitcnt lgkmcnt(0)
            v_writelane_b32 v%d, s98, %d
            """ % (VD, n))
    def count(n, sreg):
        if DIAG:
            a("v_writelane_b32 v%d, %s, %d" % (VD, sreg, n))
    def dump(role):
        if DIAG:
            a("""
            s_mov_b64 exec, -1
            s_lshl_b32 s97, s2, 9
            s_add_u32 s97, s97, %d
            v_lshlrev_b32 v%d, 2, v1
            buffer_store_dword v%d, v%d, %s, s97 offen
            """ % (0x200000 + 256 * role, VD - 1, VD, VD - 1, SRD_WS))

    def poll_loop(name, nsets, nloads, issue, check, post, delay, cnt_slot, nfast=0, after_issue=None):
        for s in range(nsets):
            issue(s, nfast > 0)
            if s < nsets - 1 and delay:
                a("s_sleep %d" % delay)
        if after_issue:
            a(after_issue)
        a("s_mov_b32 s69, 0")
        phases = ([("f", nfast)] if nfast else []) + [("s", POLL_MAX)]
        for ph, lim in phases:
            a.label(name + "_top" + ph)
            for s in range(nsets):
                a("s_waitcnt vmcnt(%d)" % ((nsets - 1) * nloads))
                check(s)
                a("s_cbranch_vccz %s_ok%d" % (name, s))
                a("s_add_u32 s69, s69, 1")
                if nsets == 1:
                    a("s_sleep 2")
                issue(s, ph == "f")
            a("""
            s_cmp_lt_u32 s69, %d
            s_cbranch_scc1 %s_top%s
            """ % (lim, name, ph))
        a("s_waitcnt vmcnt(0)")
        for s in range(nsets):
            a.label("%s_ok%d" % (name, s))
            count(cnt_slot, "s69")
            post(s)
            if s < nsets - 1:
                a("s_branch %s_done" % name)
        a.label(name + "_done")

    hdr = """; sliding-window decode attention (q-proj -> windowed attention -> out-proj), one launch.
; 256 workgroups (8 per head, 128 keys each) x 9 waves: 8 compute/load waves + 1 hand-off wave.
; Per workgroup (h,i): wq rows [80i,+80) x cols [192h,+192) -> partial q; K/V keys [3072+128i,+128);
; wo rows [192h,+192) x cols [80i,+80).  Hand-offs between workgroups go through d_ws as
; {data, tag} granules (tag = epoch word of d_ws + 1, bumped at the end of every launch),
; written with sc1 stores and polled with sc1 loads, so they do not depend on XCD placement.
; generated by gen/gen2.py
; @launch grid=(256,1,1) block=(%d,1,1) lds=%d
.amdgcn_target "amdgcn-amd-amdhsa--gfx950"
.text
.globl standalone__sliding_block_cached__decode_kernel
.p2align 8
.type standalone__sliding_block_cached__decode_kernel,@function
standalone__sliding_block_cached__decode_kernel:
""" % (NW * 64, LDS_TOTAL)

    a("""
    s_cmp_ge_u32 s2, 256
    s_cbranch_scc1 L_end
    s_load_dwordx16 s[16:31], s[0:1], 0
    v_and_b32 v1, 63, v0
    v_lshrrev_b32 v4, 6, v0
    v_lshrrev_b32 v2, 4, v1
    v_readfirstlane_b32 s3, v4
    v_and_b32 v3, 15, v1
    s_and_b32 s4, s2, 7
    s_lshr_b32 s5, s2, 3
    s_and_b32 s6, s5, 3
    s_lshl_b32 s4, s4, 2
    s_add_u32 s4, s4, s6
    s_lshr_b32 s5, s5, 2
    s_lshl_b32 s9, s4, 3
    s_add_u32 s9, s9, s5
    s_waitcnt lgkmcnt(0)
    s_load_dword s96, s[30:31], 0x%x
    """ % WS_EPOCH)
    sizes = [1280, 50331648, 50331648, 7864320, 7864320, 1280, 256, WS_BYTES]
    for n, sz in enumerate(sizes):
        r = 32 + 4 * n
        a("s_mov_b32 s%d, s%d" % (r, 16 + 2 * n))
        a("s_and_b32 s%d, s%d, 0xffff" % (r + 1, 17 + 2 * n))
        a("s_mov_b32 s%d, 0x%x" % (r + 2, sz))
        a("s_mov_b32 s%d, 0x20000" % (r + 3))
    if FAST:
      a("""
    s_add_u32 s92, s30, 0x%x
    s_addc_u32 s93, s31, 0
    s_and_b32 s93, s93, 0xffff
    s_mov_b32 s94, 0x%x
    s_mov_b32 s95, 0x20000
    """ % (FOFF, FOFF))
    if DIAG:
        a("v_mov_b32 v%d, 0" % VD)
    stamp(0)
    a("""
    s_cmp_eq_u32 s3, 8
    s_cbranch_scc1 L_comm
    """)

    a("""
    s_mul_i32 s7, s5, 160
    s_mul_i32 s8, s5, 983040
    s_mul_i32 s10, s4, 384
    s_add_u32 s8, s8, s10
    s_lshl_b32 s10, s5, 7
    s_lshl_b32 s11, s3, 4
    s_add_u32 s10, s10, s11
    s_add_u32 s10, s10, 3072
    s_mul_i32 s10, s10, 384
    s_mul_i32 s11, s4, 1572864
    s_add_u32 s10, s10, s11
    s_add_u32 s11, s10, 4096
    s_mul_i32 s12, s4, 245760
    s_add_u32 s12, s12, s7
    """)
    for m in range(4):
        a("""
        s_add_u32 s13, s3, %d
        s_min_u32 s13, s13, 29
        s_lshl_b32 s14, s13, 6
        v_add_u32 v6, s14, v1
        v_mul_u32_u24 v7, 2731, v6
        v_lshrrev_b32 v7, 16, v7
        v_mul_u32_u24 v8, 24, v7
        v_sub_u32 v8, v6, v8
        v_mul_u32_u24 v7, 12288, v7
        v_lshl_add_u32 v%d, v8, 4, v7
        s_lshl_b32 s%d, s13, 10
        s_add_u32 m0, s%d, %d
        s_nop 0
        buffer_load_dwordx4 v%d, %s, s8 offen%s lds
        """ % (8 * m, 120 + m, 64 + m, 64 + m, L_WQ, 120 + m, SRD_WQ, NT))
    a("v_lshlrev_b32 v5, 3, v2")
    for kb in range(5):
        a("buffer_load_dwordx2 v[%d:%d], v5, %s, s7 offen offset:%d" % (10 + 2 * kb, 11 + 2 * kb, SRD_X, 32 * kb))
    if cfg.get("bar0", 1):
        a("s_barrier")
    a("""
    v_mul_u32_u24 v5, 384, v3
    v_lshl_add_u32 v5, v2, 4, v5
    v_lshlrev_b32 v9, 4, v1
    """)
    def k_load(ks):
        a("buffer_load_dwordx4 v[%d:%d], v5, %s, s10 offen offset:%d%s" % (20 + 4 * ks, 23 + 4 * ks, SRD_K, 64 * ks, NT))
    def v_load(n):
        if n < 4:
            a("s_mov_b32 m0, s70")
            a("s_nop 0")
            a("buffer_load_dwordx4 v9, %s, s10 offen offset:%d%s lds" % (SRD_V, 1024 * n, NT))
        else:
            a("s_add_u32 m0, s70, 4096")
            a("s_nop 0")
            a("buffer_load_dwordx4 v9, %s, s11 offen offset:%d%s lds" % (SRD_V, 1024 * (n - 4), NT))
    def wo_load(m):
        a("s_add_u32 m0, s%d, %d" % (64 + m, L_WO))
        a("s_nop 0")
        a("buffer_load_dwordx4 v%d, %s, s12 offen%s lds" % (124 + m, SRD_WO, NT))
    for ks in range(PRE):
        k_load(ks)
    for m in range(4):
        a("""
        s_lshr_b32 s14, s%d, 4
        v_add_u32 v6, s14, v1
        v_mul_u32_u24 v7, 6554, v6
        v_lshrrev_b32 v7, 16, v7
        v_mul_u32_u24 v8, 10, v7
        v_sub_u32 v8, v6, v8
        v_mul_u32_u24 v7, 1280, v7
        v_lshl_add_u32 v%d, v8, 4, v7
        """ % (64 + m, 124 + m))
    a("""
    v_lshrrev_b32 v6, 2, v3
    v_and_b32 v7, 3, v3
    v_lshl_add_u32 v6, v2, 2, v6
    v_mul_u32_u24 v110, 384, v6
    v_lshl_add_u32 v110, v7, 3, v110
    s_mul_i32 s70, s3, 6144
    s_add_u32 s70, s70, %d
    s_add_u32 s13, s3, 8
    s_cmp_ge_u32 s13, 12
    s_cselect_b32 s14, 12, 0
    s_sub_u32 s13, s13, s14
    s_lshl_b32 s14, s3, 5
    s_lshl_b32 s15, s13, 5
    v_add_u32 v112, s14, v110
    v_add_u32 v113, s15, v110
    s_mul_i32 s68, s9, 1536
    v_lshlrev_b32 v114, 3, v3
    s_lshl_b32 s14, s3, 7
    s_lshl_b32 s15, s13, 7
    v_add_u32 v115, s15, v114
    v_add_u32 v114, s14, v114
    s_waitcnt lgkmcnt(0)
    s_add_u32 s96, s96, 1
    s_waitcnt vmcnt(%d)
    """ % (L_V, PRE))
    if cfg.get("streamtest", 0):
        SW = cfg.get("sw", 0)
        stamp(1)
        seq = [("k", ks) for ks in range(PRE, 6)] + [("v", n) for n in range(6)] + [("o", m) for m in range(4)]
        for kind, n in seq:
            if SW:
                a("s_waitcnt vmcnt(%d)" % (SW - 1))
            {"k": k_load, "v": v_load, "o": wo_load}[kind](n)
        a("s_waitcnt vmcnt(10)")
        stamp(2)
        a("s_waitcnt vmcnt(4)")
        stamp(3)
        a("s_waitcnt vmcnt(0)")
        stamp(4)
        a("s_barrier")
        stamp(5)
        a("s_cmp_lg_u32 s3, 0")
        a("s_cbranch_scc1 L_end")
        dump(0)
        a("s_endpgm")
    stamp(1)
    a("s_barrier")
    stamp(2)
    for kb in range(5):
        a("ds_read_b64_tr_b16 v[%d:%d], v112 offset:%d" % (80 + 2 * kb, 81 + 2 * kb, L_WQ + 6144 * kb))
    for kb in range(5):
        a("ds_read_b64_tr_b16 v[%d:%d], v113 offset:%d" % (90 + 2 * kb, 91 + 2 * kb, L_WQ + 6144 * kb))
    a("s_waitcnt lgkmcnt(5)")
    for kb in range(5):
        c = "0" if kb == 0 else "v[100:103]"
        a("v_mfma_f32_16x16x16_bf16 v[100:103], v[%d:%d], v[%d:%d], %s" % (10 + 2 * kb, 11 + 2 * kb, 80 + 2 * kb, 81 + 2 * kb, c))
    a("s_waitcnt lgkmcnt(0)")
    for kb in range(5):
        c = "0" if kb == 0 else "v[104:107]"
        a("v_mfma_f32_16x16x16_bf16 v[104:107], v[%d:%d], v[%d:%d], %s" % (10 + 2 * kb, 11 + 2 * kb, 90 + 2 * kb, 91 + 2 * kb, c))
    a("""
    s_nop 7
    s_nop 3
    v_mov_b32 v101, %s
    v_mov_b32 v105, %s
    s_mov_b64 exec, 0xffff
    """ % (TAG, TAG))
    if FAST:
        a("""
        buffer_store_dwordx2 v[100:101], v114, %s, s68 offen
        buffer_store_dwordx2 v[104:105], v115, %s, s68 offen
        """ % (SRD_WSF, SRD_WSF))
    a("""
    buffer_store_dwordx2 v[100:101], v114, %s, s68 offen sc1
    buffer_store_dwordx2 v[104:105], v115, %s, s68 offen sc1
    s_mov_b64 exec, -1
    """ % (SRD_WS, SRD_WS))
    stamp(3)
    if cfg.get("bar15", 0):
        a("s_barrier")
    seq = [("k", ks) for ks in range(PRE, 6)] + [("v", n) for n in range(6)] + [("o", m) for m in range(WOPRE)]
    for kind, n in seq:
        a("s_waitcnt vmcnt(%d)" % (W - 1))
        {"k": k_load, "v": v_load, "o": wo_load}[kind](n)
    stamp(4)
    a("s_barrier")
    stamp(5)
    a("v_lshlrev_b32 v6, 4, v2")
    for ks in range(6):
        a("ds_read_b128 v[%d:%d], v6 offset:%d" % (44 + 4 * ks, 47 + 4 * ks, L_Q + 64 * ks))
    a("s_waitcnt lgkmcnt(0)")
    a("s_waitcnt vmcnt(%d)" % (6 + WOPRE))
    for ks in range(6):
        c = "0" if ks == 0 else "v[100:103]"
        a("v_mfma_f32_16x16x32_bf16 v[100:103], v[%d:%d], v[%d:%d], %s" % (20 + 4 * ks, 23 + 4 * ks, 44 + 4 * ks, 47 + 4 * ks, c))
    for m in range(WOPRE, WOMID):
        a("s_waitcnt vmcnt(%d)" % (W - 1))
        wo_load(m)
    a("""
    s_nop 7
    s_nop 3
    s_mov_b32 s13, %s
    s_mov_b32 s14, %s
    s_mov_b32 s15, 0xffff0000
    v_cvt_pk_bf16_f32 v104, v100, v101
    v_cvt_pk_bf16_f32 v105, v102, v103
    v_lshlrev_b32 v100, 16, v104
    v_and_b32 v101, s15, v104
    v_lshlrev_b32 v102, 16, v105
    v_and_b32 v103, s15, v105
    v_mul_f32 v100, s13, v100
    v_mul_f32 v101, s13, v101
    v_mul_f32 v102, s13, v102
    v_mul_f32 v103, s13, v103
    v_cvt_pk_bf16_f32 v104, v100, v101
    v_cvt_pk_bf16_f32 v105, v102, v103
    v_lshlrev_b32 v100, 16, v104
    v_and_b32 v101, s15, v104
    v_lshlrev_b32 v102, 16, v105
    v_and_b32 v103, s15, v105
    v_max_f32 v104, v100, v101
    v_max3_f32 v104, v104, v102, v103
    s_nop 0
    v_readlane_b32 s72, v104, 0
    v_readlane_b32 s73, v104, 16
    v_readlane_b32 s74, v104, 32
    v_readlane_b32 s75, v104, 48
    s_nop 1
    v_mov_b32 v106, s72
    v_max_f32 v106, s73, v106
    v_max_f32 v106, s74, v106
    v_max_f32 v106, s75, v106
    v_sub_f32 v100, v100, v106
    v_sub_f32 v101, v101, v106
    v_sub_f32 v102, v102, v106
    v_sub_f32 v103, v103, v106
    v_mul_f32 v100, s14, v100
    v_mul_f32 v101, s14, v101
    v_mul_f32 v102, s14, v102
    v_mul_f32 v103, s14, v103
    v_exp_f32 v100, v100
    v_exp_f32 v101, v101
    v_exp_f32 v102, v102
    v_exp_f32 v103, v103
    s_nop 0
    v_add_f32 v104, v100, v101
    v_add_f32 v105, v102, v103
    v_add_f32 v104, v104, v105
    v_cvt_pk_bf16_f32 v108, v100, v101
    v_cvt_pk_bf16_f32 v109, v102, v103
    v_readlane_b32 s72, v104, 0
    v_readlane_b32 s73, v104, 16
    v_readlane_b32 s74, v104, 32
    v_readlane_b32 s75, v104, 48
    s_nop 1
    v_mov_b32 v107, s72
    v_add_f32 v107, s73, v107
    v_add_f32 v107, s74, v107
    v_add_f32 v107, s75, v107
    """ % (SCALE, LOG2E))
    PVF = cfg.get("pvfirst", 1)
    nwo = max(WOPRE, WOMID)
    if not PVF:
        for m in range(nwo, 4):
            a("s_waitcnt vmcnt(%d)" % (W - 1))
            wo_load(m)
        nwo = 4
    stamp(6)
    a("s_waitcnt vmcnt(%d)" % nwo)
    stamp(7)
    a("v_add_u32 v112, s70, v110")
    for t in range(12):
        a("ds_read_b64_tr_b16 v[%d:%d], v112 offset:%d" % (20 + 2 * t, 21 + 2 * t, 32 * t))
    for t in range(12):
        a("s_waitcnt lgkmcnt(%d)" % (11 - t))
        a("v_mfma_f32_16x16x16_bf16 v[%d:%d], v[108:109], v[%d:%d], 0" % (44 + 4 * t, 47 + 4 * t, 20 + 2 * t, 21 + 2 * t))
    for m in range(nwo, 4):
        wo_load(m)
    a("""
    s_mul_i32 s13, s3, 768
    v_lshlrev_b32 v6, 2, v3
    v_add_u32 v6, s13, v6
    s_lshl_b32 s13, s3, 3
    v_mov_b32 v7, s13
    s_nop 4
    s_mov_b64 exec, 0xffff
    """)
    for t in range(12):
        a("ds_write_b32 v6, v%d offset:%d" % (44 + 4 * t, L_OW + 64 * t))
    a("""
    s_mov_b64 exec, 1
    ds_write_b64 v7, v[106:107] offset:%d
    s_mov_b64 exec, -1
    s_waitcnt lgkmcnt(0)
    """ % L_ML)
    stamp(8)
    a("s_barrier")
    a("""
    v_lshrrev_b32 v6, 2, v3
    v_and_b32 v7, 3, v3
    v_lshl_add_u32 v6, v2, 3, v6
    v_mul_u32_u24 v112, 160, v6
    v_lshl_add_u32 v112, v7, 3, v112
    s_lshl_b32 s13, s3, 5
    v_add_u32 v112, s13, v112
    v_lshlrev_b32 v6, 4, v2
    s_lshl_b32 s13, s5, 5
    s_add_u32 s13, s13, s4
    s_mul_i32 s13, s13, 640
    s_lshl_b32 s14, s3, 7
    s_add_u32 s13, s13, s14
    s_add_u32 s13, s13, %d
    v_lshlrev_b32 v114, 3, v3
    s_waitcnt vmcnt(0)
    """ % WS_OUT)
    stamp(9)
    a("s_barrier")
    stamp(10)
    a("""
    s_cmp_ge_u32 s3, 5
    s_cbranch_scc1 L_end
    """)
    for kb in range(6):
        a("ds_read_b128 v[%d:%d], v6 offset:%d" % (44 + 4 * kb, 47 + 4 * kb, L_OBF + 64 * kb))
        a("ds_read_b64_tr_b16 v[%d:%d], v112 offset:%d" % (20 + 4 * kb, 21 + 4 * kb, L_WO + 5120 * kb))
        a("ds_read_b64_tr_b16 v[%d:%d], v112 offset:%d" % (22 + 4 * kb, 23 + 4 * kb, L_WO + 5120 * kb + 640))
    for kb in range(6):
        a("s_waitcnt lgkmcnt(%d)" % (15 - 3 * kb))
        c = "0" if kb == 0 else "v[100:103]"
        a("v_mfma_f32_16x16x32_bf16 v[100:103], v[%d:%d], v[%d:%d], %s" % (44 + 4 * kb, 47 + 4 * kb, 20 + 4 * kb, 23 + 4 * kb, c))
    a("""
    s_nop 7
    s_nop 3
    v_mov_b32 v101, %s
    s_mov_b64 exec, 0xffff
    buffer_store_dwordx2 v[100:101], v114, %s, s13 offen sc1
    """ % (TAG, SRD_WS))
    stamp(11)
    if DIAG:
        a("s_cmp_lg_u32 s3, 0")
        a("s_cbranch_scc1 L_end")
        dump(0)
    a("s_endpgm")

    a.label("L_comm")
    if cfg.get("streamtest", 0):
        a("s_barrier")
        a("s_endpgm")
    a("""
    v_mov_b32 v5, 0
    s_mul_i32 s68, s4, 12288
    v_lshlrev_b32 v7, 3, v1
    s_mov_b32 s14, %s
    """ % LOG2E)
    for ip in range(8):
        a("s_add_u32 s%d, s68, %d" % (72 + ip, WS_Q + 1536 * ip))
    if cfg.get("warm", 1):
        a("""
        s_lshl_b32 s10, s5, 7
        s_add_u32 s10, s10, 3072
        s_mul_i32 s10, s10, 384
        s_mul_i32 s11, s4, 1572864
        s_add_u32 s10, s10, s11
        s_mul_i32 s12, s4, 245760
        s_add_u32 s13, s12, 245000
        buffer_load_dword v100, v5, %s, s10 offen
        buffer_load_dword v101, v5, %s, s12 offen
        buffer_load_dword v102, v5, %s, s13 offen
        buffer_load_dword v103, v5, %s, s68 offen
        buffer_load_dword v105, v5, %s, 0 offen
        """ % (SRD_V, SRD_WO, SRD_WO, SRD_WS, SRD_OUT))
    if cfg.get("warm", 1) >= 2:
        a("""
        v_lshlrev_b32 v106, 12, v1
        s_mov_b64 exec, 0xfff
        buffer_load_dword v107, v106, %s, s10 offen nt
        s_mov_b32 exec_hi, 0x0fffffff
        s_mov_b32 exec_lo, -1
        buffer_load_dword v108, v106, %s, s12 offen nt
        s_mov_b64 exec, -1
        """ % (SRD_V, SRD_WO))
    if cfg.get("bar0", 1):
        a("s_barrier")
    a("""
    s_waitcnt lgkmcnt(0)
    s_add_u32 s96, s96, 1
    s_barrier
    """)
    stamp(2)
    a("s_sleep %d" % cfg.get("sleep1", 40))
    QS = cfg.get("qsets", 1)
    def q_issue(s, fast):
        for cb in range(3):
            for ip in range(8):
                r = 10 + 48 * s + 2 * (cb * 8 + ip)
                a("buffer_load_dwordx2 v[%d:%d], v7, %s, s%d offen offset:%d %s" % (r, r + 1, SRD_WSF if fast else SRD_WS, 72 + ip, 512 * cb, "sc0" if fast else "sc1"))
    def q_check(s):
        b = 10 + 48 * s
        a("v_xor_b32 v8, %s, v%d" % (TAG, b + 1))
        for k in range(1, 24):
            a("v_xor_b32 v9, %s, v%d" % (TAG, b + 1 + 2 * k))
            a("v_or_b32 v8, v8, v9")
        a("v_cmp_ne_u32 vcc, 0, v8")
    def q_post(s):
        b = 10 + 48 * s
        for cb in range(3):
            r0 = b + 16 * cb
            for ip in range(1, 8):
                a("v_add_f32 v%d, v%d, v%d" % (r0, r0, r0 + 2 * ip))
            a("v_cvt_pk_bf16_f32 v%d, v%d, v%d" % (r0, r0, r0))
        a("v_lshlrev_b32 v6, 1, v1")
        for cb in range(3):
            a("ds_write_b16 v6, v%d offset:%d" % (b + 16 * cb, L_Q + 128 * cb))
    poll_loop("L_pq", QS, 24, q_issue, q_check, q_post, cfg.get("qdelay", 16), 13, cfg.get("qfast", 3) if FAST else 0, "s_barrier" if cfg.get("bar15", 0) else None)
    stamp(3)
    a("""
    s_waitcnt lgkmcnt(0)
    s_barrier
    """)
    stamp(4)
    a("""
    v_lshlrev_b32 v7, 4, v1
    s_lshl_b32 s13, s9, 10
    s_add_u32 s13, s13, %d
    s_lshl_b32 s15, s9, 4
    s_add_u32 s15, s15, %d
    s_lshl_b32 s88, s4, 13
    s_add_u32 s88, s88, %d
    s_add_u32 s89, s88, 4096
    s_lshl_b32 s68, s4, 7
    s_add_u32 s68, s68, %d
    v_and_b32 v8, 7, v1
    v_lshlrev_b32 v8, 4, v8
    v_lshlrev_b32 v9, 2, v1
    v_mov_b32 v6, 0
    s_waitcnt vmcnt(0)
    s_barrier
    """ % (WS_O, WS_ML, WS_O, WS_ML))
    stamp(5)
    T = 120
    for k in range(4):
        a("ds_read_b128 v[%d:%d], v6 offset:%d" % (T + 4 * k, T + 3 + 4 * k, L_ML + 16 * k))
    for w in range(8):
        for cb in range(3):
            a("ds_read_b32 v%d, v9 offset:%d" % (10 + 3 * w + cb, L_OW + 768 * w + 256 * cb))
    a("s_waitcnt lgkmcnt(15)")
    a("v_max_f32 v%d, v%d, v%d" % (T + 20, T, T + 2))
    for w in range(2, 8):
        a("v_max_f32 v%d, v%d, v%d" % (T + 20, T + 20, T + 2 * w))
    for w in range(8):
        a("v_sub_f32 v%d, v%d, v%d" % (T + 2 * w, T + 2 * w, T + 20))
    for w in range(8):
        a("v_mul_f32 v%d, s14, v%d" % (T + 2 * w, T + 2 * w))
    for w in range(8):
        a("v_exp_f32 v%d, v%d" % (T + 2 * w, T + 2 * w))
    a("s_nop 0")
    a("v_mul_f32 v%d, v%d, v%d" % (T + 21, T, T + 1))
    for w in range(1, 8):
        a("v_fmac_f32 v%d, v%d, v%d" % (T + 21, T + 2 * w, T + 1 + 2 * w))
    a("s_waitcnt lgkmcnt(0)")
    for cb in range(3):
        a("v_mul_f32 v%d, v%d, v%d" % (T + 24 + cb, T, 10 + cb))
        for w in range(1, 8):
            a("v_fmac_f32 v%d, v%d, v%d" % (T + 24 + cb, T + 2 * w, 10 + 3 * w + cb))
    a("""
    v_mov_b32 v%d, %s
    v_mov_b32 v%d, %s
    v_mov_b32 v%d, %s
    """ % (T + 27, TAG, T + 22, TAG, T + 23, TAG))
    for srd, fl in ([(SRD_WSF, "")] if FAST else []) + [(SRD_WS, "sc1")]:
        a("""
        buffer_store_dwordx4 v[%d:%d], v7, %s, s13 offen %s
        s_mov_b64 exec, 1
        buffer_store_dwordx4 v[%d:%d], v5, %s, s15 offen %s
        s_mov_b64 exec, -1
        """ % (T + 24, T + 27, srd, fl, T + 20, T + 23, srd, fl))
    stamp(6)
    if cfg.get("sleep2", 8):
        a("s_sleep %d" % cfg.get("sleep2", 8))
    OS = cfg.get("osets", 2)
    def o_issue(s, fast):
        b = 10 + 36 * s
        srd = SRD_WSF if fast else SRD_WS
        fl = "sc0" if fast else "sc1"
        for ip in range(8):
            a("buffer_load_dwordx4 v[%d:%d], v7, %s, %s offen offset:%d %s" % (
                b + 4 * ip, b + 3 + 4 * ip, srd, "s88" if ip < 4 else "s89", 1024 * (ip % 4), fl))
        a("buffer_load_dwordx4 v[%d:%d], v8, %s, s68 offen %s" % (b + 32, b + 35, srd, fl))
    def o_check(s):
        b = 10 + 36 * s
        a("v_xor_b32 v%d, %s, v%d" % (T + 30, TAG, b + 34))
        for ip in range(8):
            a("v_xor_b32 v%d, %s, v%d" % (T + 31, TAG, b + 3 + 4 * ip))
            a("v_or_b32 v%d, v%d, v%d" % (T + 30, T + 30, T + 31))
        a("v_cmp_ne_u32 vcc, 0, v%d" % (T + 30))
    def o_post(s):
        b = 10 + 36 * s
        for ip in range(8):
            a("v_readlane_b32 s%d, v%d, %d" % (72 + ip, b + 32, ip))
            a("v_readlane_b32 s%d, v%d, %d" % (80 + ip, b + 33, ip))
        a("s_nop 1")
        a("v_mov_b32 v%d, s72" % (T + 8))
        for ip in range(1, 8):
            a("v_max_f32 v%d, s%d, v%d" % (T + 8, 72 + ip, T + 8))
        for ip in range(8):
            a("v_sub_f32 v%d, s%d, v%d" % (T + ip, 72 + ip, T + 8))
        for ip in range(8):
            a("v_mul_f32 v%d, s14, v%d" % (T + ip, T + ip))
        for ip in range(8):
            a("v_exp_f32 v%d, v%d" % (T + ip, T + ip))
        a("s_nop 0")
        a("v_mul_f32 v%d, s80, v%d" % (T + 9, T))
        for ip in range(1, 8):
            a("v_fmac_f32 v%d, s%d, v%d" % (T + 9, 80 + ip, T + ip))
        a("v_rcp_f32 v%d, v%d" % (T + 9, T + 9))
        for cb in range(3):
            a("v_mul_f32 v%d, v%d, v%d" % (T + 10 + cb, T, b + cb))
            for ip in range(1, 8):
                a("v_fmac_f32 v%d, v%d, v%d" % (T + 10 + cb, T + ip, b + 4 * ip + cb))
        for cb in range(3):
            a("v_mul_f32 v%d, v%d, v%d" % (T + 10 + cb, T + 10 + cb, T + 9))
            a("v_cvt_pk_bf16_f32 v%d, v%d, v%d" % (T + 10 + cb, T + 10 + cb, T + 10 + cb))
        a("v_lshlrev_b32 v6, 1, v1")
        for cb in range(3):
            a("ds_write_b16 v6, v%d offset:%d" % (T + 10 + cb, L_OBF + 128 * cb))
    poll_loop("L_po", OS, 9, o_issue, o_check, o_post, cfg.get("odelay", 24), 14, cfg.get("ofast", 6) if FAST else 0)
    stamp(7)
    a("""
    s_waitcnt lgkmcnt(0)
    s_barrier
    """)
    stamp(8)
    if DIAG:
        dump(1)
    a("""
    s_cmp_ge_u32 s4, 5
    s_cbranch_scc1 L_end
    s_mul_i32 s13, s5, 20480
    s_lshl_b32 s15, s4, 7
    s_add_u32 s13, s13, s15
    s_add_u32 s13, s13, %d
    v_mul_u32_u24 v7, 640, v2
    v_lshl_add_u32 v7, v3, 3, v7
    """ % WS_OUT)
    for m in range(8):
        a("s_add_u32 s%d, s13, %d" % (72 + m, 2560 * m))
    if cfg.get("sleep3", 8):
        a("s_sleep %d" % cfg.get("sleep3", 8))
    FS = cfg.get("fsets", 4)
    def f_issue(s, fast):
        b = 10 + 16 * s
        for m in range(8):
            a("buffer_load_dwordx2 v[%d:%d], v7, %s, s%d offen sc1" % (b + 2 * m, b + 1 + 2 * m, SRD_WS, 72 + m))
    def f_check(s):
        b = 10 + 16 * s
        a("v_xor_b32 v%d, %s, v%d" % (T + 30, TAG, b + 1))
        for m in range(1, 8):
            a("v_xor_b32 v%d, %s, v%d" % (T + 31, TAG, b + 1 + 2 * m))
            a("v_or_b32 v%d, v%d, v%d" % (T + 30, T + 30, T + 31))
        a("v_cmp_ne_u32 vcc, 0, v%d" % (T + 30))
    def f_post(s):
        b = 10 + 16 * s
        a("v_add_f32 v%d, v%d, v%d" % (T, b, b + 2))
        for m in range(2, 8):
            a("v_add_f32 v%d, v%d, v%d" % (T, T, b + 2 * m))
    poll_loop("L_pf", FS, 8, f_issue, f_check, f_post, cfg.get("fdelay", 12), 15)
    stamp(9)
    a("""
    v_mov_b32 v{1}, v{0}
    s_nop 1
    v_permlane32_swap_b32 v{0}, v{1}
    v_add_f32 v{0}, v{0}, v{1}
    v_mov_b32 v{1}, v{0}
    s_nop 1
    v_permlane16_swap_b32 v{0}, v{1}
    v_add_f32 v{0}, v{0}, v{1}
    v_cvt_pk_bf16_f32 v{0}, v{0}, v{0}
    s_mul_i32 s13, s5, 160
    s_lshl_b32 s15, s4, 5
    s_add_u32 s13, s13, s15
    v_lshlrev_b32 v7, 1, v3
    s_mov_b64 exec, 0xffff
    buffer_store_short v{0}, v7, {2}, s13 offen
    """.format(T, T + 1, SRD_OUT))
    a("""
    s_cmp_lg_u32 s9, 0
    s_cbranch_scc1 L_noepoch
    v_mov_b32 v6, %s
    s_mov_b32 s13, 0x%x
    s_mov_b64 exec, 1
    buffer_store_dword v6, v5, %s, s13 offen sc1
    """ % (TAG, WS_EPOCH, SRD_WS))
    stamp(10)
    if DIAG and cfg.get("dbgdump", 0):
        a("""
        s_mov_b64 exec, 0xffff
        v_readlane_b32 s13, v%d, 0
        s_nop 1
        v_subrev_u32 v%d, s13, v%d
        v_lshlrev_b32 v%d, 2, v1
        buffer_store_dword v%d, v%d, %s, 0 offen
        """ % (VD, VD, VD, VD - 1, VD, VD - 1, SRD_DBG))
    a.label("L_noepoch")
    stamp(10)
    if DIAG:
        dump(1)
    a.label("L_end")
    a("s_endpgm")

    tail = """.section .rodata,"a"
.p2align 6
.amdhsa_kernel standalone__sliding_block_cached__decode_kernel
  .amdhsa_next_free_vgpr 168
  .amdhsa_next_free_sgpr 100
  .amdhsa_accum_offset 168
  .amdhsa_group_segment_fixed_size 0
  .amdhsa_kernarg_size 64
  .amdhsa_user_sgpr_count 2
  .amdhsa_user_sgpr_kernarg_segment_ptr 1
  .amdhsa_system_sgpr_workgroup_id_x 1
.end_amdhsa_kernel
"""
    return hdr + a.text() + tail

if __name__ == "__main__":
    cfg = {}
    out = "standalone__sliding_block_cached__decode.s"
    for arg in sys.argv[1:]:
        k, v = arg.split("=")
        if k == "out":
            out = v
        else:
            cfg[k] = int(v)
    open(out, "w").write(gen(cfg))
    print("wrote", out)
```
